```python
import torch

def _softmax(x, axis=-1):
    return torch.softmax(x, dim=axis)

def _gelu(x):
    return torch.nn.functional.gelu(x, approximate='tanh')

def _silu(x):
    return torch.nn.functional.silu(x)

def _sigmoid(x):
    return torch.sigmoid(x)

def _layernorm(x, axis=-1, eps=1e-05):
    m = x.mean(dim=axis, keepdim=True)
    v = x.var(dim=axis, keepdim=True, unbiased=False)
    return (x - m) / torch.sqrt(v + eps)

def _scatter_add(tgt, idx, src, axis=0):
    return tgt.clone().index_add_(axis, idx, src)

def _segment_sum(src, seg, n):
    out = torch.zeros((n,) + src.shape[1:], dtype=src.dtype)
    return out.index_add_(0, seg, src)

def _pad(x, pw):
    flat = tuple((v for pair in reversed(pw) for v in pair))
    return torch.nn.functional.pad(x, flat)
kernel_name = 'adaLN_cond__memory_aug_recurrent_mem_tr__mixer_channel_mlp__prompt'

def setup_inputs():

    _w = lambda a: (lambda t: t.to(torch.bfloat16) if t.is_floating_point() else t)(torch.as_tensor(a))

    def _A_setup():
        B, S, Dm = (1, 2048, 640)
        H, Dh = (32, 192)
        M, seg = (8, 32)
        seg = min(seg, S)
        S = S // seg * seg
        return {'x': _w((lambda *s: torch.randn(*s, dtype=torch.bfloat16) * 0.05)(B, S, Dm)), 'mem0': _w((lambda *s: torch.randn(*s, dtype=torch.bfloat16) * 0.4)(B, M, Dm)), 'Wq': _w((lambda *s: torch.randn(*s, dtype=torch.bfloat16) * 1.6)(Dm, H, Dh) * Dm ** (-0.5)), 'Wk': _w((lambda *s: torch.randn(*s, dtype=torch.bfloat16) * 1.6)(Dm, H, Dh) * Dm ** (-0.5)), 'Wv': _w((lambda *s: torch.randn(*s, dtype=torch.bfloat16) * 0.4)(Dm, H, Dh) * Dm ** (-0.5)), 'Wo': _w((lambda *s: torch.randn(*s, dtype=torch.bfloat16) * 0.4)(H, Dh, Dm) * (H * Dh) ** (-0.5)), 'seg_len': seg}
    _A_in = _A_setup()

    def _B_setup():
        B, S, D, F = (1, 2048, 640, 1536)
        return {'x': _w((lambda *s: torch.randn(*s, dtype=torch.bfloat16) * 0.05)(B, S, D)), 'w1': _w((lambda *s: torch.randn(*s, dtype=torch.bfloat16) * 1.6)(D, F) * D ** (-0.5)), 'b1': _w((lambda *s: torch.randn(*s, dtype=torch.bfloat16) * 0.4)(F)), 'w2': _w((lambda *s: torch.randn(*s, dtype=torch.bfloat16) * 0.1)(F, D) * F ** (-0.5)), 'b2': _w((lambda *s: torch.randn(*s, dtype=torch.bfloat16) * 0.1)(D))}
    _B_in = _B_setup()
    return {'A_x': _A_in['x'], 'A_mem0': _A_in['mem0'], 'A_Wq': _A_in['Wq'], 'A_Wk': _A_in['Wk'], 'A_Wv': _A_in['Wv'], 'A_Wo': _A_in['Wo'], 'A_seg_len': _A_in['seg_len'], 'B_x': _B_in['x'], 'B_w1': _B_in['w1'], 'B_b1': _B_in['b1'], 'B_w2': _B_in['w2'], 'B_b2': _B_in['b2'], 'c': _w((lambda *s: torch.randn(*s, dtype=torch.bfloat16) * 0.1)(1, 640) * 8.0), 'w_mod': _w((lambda *s: torch.randn(*s, dtype=torch.bfloat16) * 0.1)(640, 6 * 640) * 640 ** (-0.5) * 8.0)}

def reference(A_x, A_mem0, A_Wq, A_Wk, A_Wv, A_Wo, A_seg_len, B_x, B_w1, B_b1, B_w2, B_b2, c, w_mod):

    def _A_ref(x, mem0, Wq, Wk, Wv, Wo, seg_len):
        B, S, Dm = x.shape
        H, Dh = (Wq.shape[1], Wq.shape[2])
        M = mem0.shape[1]
        scale = Dh ** (-0.5)
        n_seg = S // seg_len
        L = M + seg_len
        idx = torch.arange(L)
        mask = (idx[:, None] < M) | (idx[:, None] >= idx[None, :])
        mem = mem0
        outs = []
        for s in range(n_seg):
            xs = x[:, s * seg_len:(s + 1) * seg_len, :].clone()
            h = torch.concatenate([mem, xs], axis=1)
            q = torch.einsum('btd,dhe->bhte', h, Wq)
            k = torch.einsum('btd,dhe->bhte', h, Wk)
            v = torch.einsum('btd,dhe->bhte', h, Wv)
            scores = torch.einsum('bhqe,bhke->bhqk', q, k) * scale
            scores = torch.where(mask[None, None], scores, -1000000000.0)
            p = _softmax(scores, axis=-1)
            o = torch.einsum('bhqk,bhke->bhqe', p, v)
            o = torch.einsum('bhte,hed->btd', o, Wo)
            mem = o[:, :M, :].clone()
            outs.append(o[:, M:, :])
        return torch.concatenate(outs, axis=1)

    def _B_ref(x, w1, b1, w2, b2):
        y = _layernorm(x, axis=-1)
        h = _gelu(torch.einsum('bsd,df->bsf', y, w1) + b1)
        return torch.einsum('bsf,fd->bsd', h, w2) + b2
    x = A_x
    mod = (_silu(c) @ w_mod).reshape(c.shape[0], 6, 1, -1)
    sa, ca, ga, sb, cb, gb = (mod[:, 0].clone(), mod[:, 1].clone(), mod[:, 2].clone(), mod[:, 3].clone(), mod[:, 4].clone(), mod[:, 5].clone())
    h = _layernorm(x, axis=-1) * (1 + ca) + sa
    x = x + ga * _A_ref(h, A_mem0, A_Wq, A_Wk, A_Wv, A_Wo, A_seg_len)
    h = _layernorm(x, axis=-1) * (1 + cb) + sb
    x = x + gb * _B_ref(h, B_w1, B_b1, B_w2, B_b2)
    return x
```

```python
NAME = "adaLN_cond__memory_aug_recurrent_mem_tr__mixer_channel_mlp__prompt"

class Asm:
    def __init__(self):
        self.lines = []
        self._lab = 0
    def __call__(self, s):
        for ln in s.strip("\n").split("\n"):
            if ln.strip(): self.lines.append("    " + ln.strip())
    def label(self, name):
        self.lines.append(name + ":")
    def newlabel(self, base="L"):
        self._lab += 1
        return f".{base}_{self._lab}"
    def comment(self, s):
        self.lines.append("    ; " + s)
    def raw(self, s):
        self.lines.append(s)
    def text(self):
        return "\n".join(self.lines) + "\n"

def vr(a, n=1):
    return f"v{a}" if n == 1 else f"v[{a}:{a+n-1}]"
def ar(a, n=1):
    return f"a{a}" if n == 1 else f"a[{a}:{a+n-1}]"
def sr(a, n=1):
    return f"s{a}" if n == 1 else f"s[{a}:{a+n-1}]"
def ur(a, n=1):
    if a < 256:
        assert a + n <= 256
        return vr(a, n)
    return ar(a - 256, n)

def kernel_begin(A, label):
    A.raw(f".globl {label}")
    A.raw(".p2align 8")
    A.raw(f".type {label},@function")
    A.label(label)

def kdesc(label, vgpr=512, sgpr=102, accum=256):
    return f""".p2align 6
.amdhsa_kernel {label}
  .amdhsa_next_free_vgpr {vgpr}
  .amdhsa_next_free_sgpr {sgpr}
  .amdhsa_accum_offset {accum}
  .amdhsa_group_segment_fixed_size 0
  .amdhsa_kernarg_size 136
  .amdhsa_user_sgpr_count 2
  .amdhsa_user_sgpr_kernarg_segment_ptr 1
  .amdhsa_system_sgpr_workgroup_id_x 1
  .amdhsa_float_denorm_mode_32 3
  .amdhsa_float_denorm_mode_16_64 3
.end_amdhsa_kernel
"""

HEADER = open("cdna_kernels/" + NAME + ".s.ref").read().split("; Override launch")[0]

def assemble_file(launches, body_text, descs):
    s = HEADER
    for (lab, g, b, lds) in launches:
        s += f"; @launch kernel={lab} grid=({g},1,1) block=({b},1,1) lds={lds}\n"
    s += '.amdgcn_target "amdgcn-amd-amdhsa--gfx950"\n.text\n'
    s += body_text
    s += '.section .rodata,"a"\n'
    for d in descs:
        s += d
    return s
```

```python
from asmlib import *
from layout import *
import mega
from mega import f2h, load_weights

WL = 0
MEMB = 73728
KQB = 83968
UB_S = 133120
QF = 149504
KM = 152576
RB = 158720
NLDS = 9
W0 = 104
SC = 32

def wreg(i):
    if i < 32: return f"a[{8*i}:{8*i+7}]", ('a', 8*i)
    b = W0 + 8*(i-32)
    return f"v[{b}:{b+7}]", ('v', b)

def l2p(A, v, tmp):
    A(f"v_lshrrev_b32 v{tmp}, 13, v{v}\nv_lshlrev_b32 v{tmp}, 13, v{tmp}\nv_add_u32 v{v}, v{v}, v{tmp}")

def maxtree(A, regs, t0):
    regs = list(regs)
    A(f"v_max3_u32 v{t0}, v{regs[0]}, v{regs[1]}, v{regs[2]}")
    A(f"v_max3_u32 v{t0+1}, v{regs[3]}, v{regs[4]}, v{regs[5]}")
    i = 6; k = 0
    while i < len(regs):
        A(f"v_max3_u32 v{t0+k}, v{t0+k}, v{regs[i]}, v{regs[i+1]}")
        i += 2; k ^= 1
    A(f"v_max_u32 v{t0}, v{t0}, v{t0+1}")
    A(f"v_cmp_eq_u32 vcc, -1, v{t0}")

def tr_addr_sparse(A, vd, npanel):
    t = vd + 4
    A(f"""
    v_lshrrev_b32 v{t}, 5, v1                ; gB>>1
    v_lshlrev_b32 v{t}, 1, v{t}
    v_bfe_u32 v{t+1}, v1, 3, 1               ; i>>3
    v_add_u32 v{t}, v{t}, v{t+1}             ; rb
    v_mul_u32_u24 v{t}, {npanel*1024}, v{t}
    v_bfe_u32 v{t+2}, v1, 4, 1               ; gB&1
    v_lshlrev_b32 v{t+3}, 9, v{t+2}          ; 4 rows*128
    v_add_u32 v{t}, v{t}, v{t+3}
    v_bfe_u32 v{t+3}, v1, 2, 1
    v_lshlrev_b32 v{t+3}, 7, v{t+3}
    v_add_u32 v{t}, v{t}, v{t+3}
    v_and_b32 v{t+3}, 3, v1
    v_lshlrev_b32 v{t+3}, 3, v{t+3}
    v_add_u32 v{t}, v{t}, v{t+3}
    v_lshlrev_b32 v{t+1}, 1, v{t+1}
    v_or_b32 v{t+1}, v{t+1}, v{t+2}          ; f
    """)
    for pr in range(4):
        A(f"v_xor_b32 v{t+2}, {pr}, v{t+1}\nv_lshlrev_b32 v{t+2}, 5, v{t+2}\nv_add_u32 v{vd+pr}, v{t}, v{t+2}")

def load_sparse_weights(A, wbase, RS, nrows, npanel, tiles_of_wave, ntile, fragidx, dest, chunk_rows, nbuf):
    tr_addr_sparse(A, 8, npanel)
    AB = 12
    assert AB + 2*ntile <= 32
    for w in range(4):
        l = A.newlabel("sw")
        A(f"s_cmp_lg_u32 s12, {w}\ns_cbranch_scc1 {l}")
        tmp = []
        for j in range(ntile):
            T = tiles_of_wave(w, j)
            tmp.append((T >> 2, T & 3))
        for j, (pn, pr) in enumerate(tmp):
            A(f"v_add_u32 v{AB+2*j}, {pn*1024}, v{8+pr}")
            A(f"v_add_u32 v{AB+2*j+1}, {pn*1024 + 256}, v{8+(pr^1)}")
        A.label(l)
    state = {'buf': 0}
    half_bytes = 4*npanel*1024
    def frags(c, buf):
        delta = buf - state['buf']
        state['buf'] = buf
        if delta:
            for j in range(2*ntile):
                A(f"v_add_u32 v{AB+j}, {delta & 0xffffffff}, v{AB+j}")
        for tl in range(chunk_rows // 64):
            t = c*(chunk_rows//64) + tl
            for j in range(ntile):
                kind, b = dest(fragidx(t, j))
                for hf in range(2):
                    off = (tl*2 + hf)*half_bytes
                    assert off < 65536
                    A(f"ds_read_b64_tr_b16 {kind}[{b+4*hf}:{b+4*hf+1}], v{AB+2*j} offset:{off}")
                    A(f"ds_read_b64_tr_b16 {kind}[{b+4*hf+2}:{b+4*hf+3}], v{AB+2*j+1} offset:{off}")
    load_weights(A, wbase, RS, nrows, npanel, 'dense', frags, chunk_rows=chunk_rows, nbuf=nbuf)

def frag_dest(fid):
    if fid < 51: return wreg(fid)[1]
    return ('v', SC + 8*(fid-51))

def spill_lds_frags(A):
    A(f"""
    v_lshlrev_b32 v2, 4, v1
    s_mul_i32 s15, s12, {NLDS*2048}
    v_add_u32 v2, s15, v2
    """)
    for i in range(NLDS):
        b = SC + 8*i
        A(f"ds_write_b128 v2, v[{b}:{b+3}] offset:{WL + i*2048}")
        A(f"ds_write_b128 v2, v[{b+4}:{b+7}] offset:{WL + i*2048 + 1024}")
    A("s_waitcnt lgkmcnt(0)")

def common_setup(A, isV, opts):
    UB = KQB if isV else UB_S
    A(f"""
    s_lshr_b32 s18, s13, 1
    s_lshr_b32 s20, s13, 2
    s_mul_i32 s20, s20, 40
    s_and_b32 s21, s13, 3
    s_mov_b32 s22, 0
    s_cmp_eq_u32 s21, 1
    s_cselect_b32 s22, 8, s22
    s_cmp_eq_u32 s21, 2
    s_cselect_b32 s22, 24, s22
    s_cmp_eq_u32 s21, 3
    s_cselect_b32 s22, 32, s22
    s_add_u32 s20, s20, s22        ; col0
    s_cmp_eq_u32 s21, 1
    s_cselect_b32 s21, 16, 8       ; width
    s_mul_i32 s22, s12, 16384
    s_add_u32 s22, s22, 5120
    v_lshlrev_b32 v4, 4, v1
    v_add_u32 v4, s22, v4
    v_lshlrev_b32 v5, 3, v1
    v_add_u32 v5, s22, v5
    v_add_u32 v5, 2048, v5
    s_mul_i32 s23, s12, 2560
    s_add_u32 s23, s23, {MEMB}
    v_lshlrev_b32 v6, 4, v1
    v_add_u32 v6, s23, v6
    v_lshlrev_b32 v7, 3, v1
    v_add_u32 v7, s23, v7
    v_add_u32 v7, 2048, v7
    v_lshrrev_b32 v2, 4, v1
    v_lshlrev_b32 v2, 8, v2
    v_and_b32 v3, 1, v1
    v_lshlrev_b32 v3, 7, v3
    v_add_u32 v2, v2, v3
    v_bfe_u32 v3, v1, 1, 3
    v_lshlrev_b32 v3, 4, v3
    v_add_u32 v2, v2, v3
    v_add_u32 v8, {MEMB}, v2
    v_and_b32 v3, 1, v1
    v_cmp_eq_u32 vcc, 1, v3
    v_mov_b32 v9, 0x4444
    v_mov_b32 v3, 0xeeee
    v_cndmask_b32 v9, v9, v3, vcc
    v_lshlrev_b32 v10, 4, v1
    s_mul_i32 s15, s12, {NLDS*2048}
    v_add_u32 v10, s15, v10
    v_lshrrev_b32 v2, 5, v1
    v_mul_u32_u24 v2, 640, v2
    v_and_b32 v3, 31, v1
    v_lshlrev_b32 v3, 4, v3
    v_add_u32 v2, v2, v3
    s_mul_i32 s23, s12, 16384
    v_add_u32 v11, s23, v2
    v_lshrrev_b32 v2, 4, v1
    v_mul_u32_u24 v2, 1280, v2
    v_and_b32 v3, 15, v1
    v_lshlrev_b32 v3, 3, v3
    v_add_u32 v2, v2, v3
    v_add_u32 v2, 512, v2
    v_add_u32 v12, s23, v2
    s_lshl_b32 s24, s21, 4
    v_lshrrev_b32 v2, 4, v1
    s_lshl_b32 s25, s12, 3
    v_add_u32 v2, s25, v2
    v_mul_lo_u32 v2, v2, s24
    s_sub_u32 s25, s21, 1
    v_and_b32 v3, s25, v1
    v_lshlrev_b32 v15, 4, v3
    v_add_u32 v2, v2, v15
    s_lshl_b32 s25, s20, 9
    s_add_u32 s25, s25, 32768
    v_add_u32 v13, s25, v2
    s_lshl_b32 s25, s24, 2
    v_add_u32 v14, s25, v13
    """)
    l2p(A, 13, 2); l2p(A, 14, 2)
    A(f"""
    s_lshl_b32 s26, s21, 6
    v_lshlrev_b32 v15, 6, v3
    v_lshrrev_b32 v2, 4, v1
    v_lshlrev_b32 v2, 4, v2
    v_add_u32 v15, v15, v2
    s_lshl_b32 s25, s26, 3
    s_mul_i32 s27, s25, s12
    s_add_u32 s27, s27, {UB}
    v_add_u32 v15, s27, v15
    v_add_u32 v16, s26, v15          ; head+1
    v_lshrrev_b32 v2, 5, v1
    v_mul_u32_u24 v2, 40960, v2
    v_and_b32 v3, 31, v1
    v_lshlrev_b32 v3, 4, v3
    v_add_u32 v2, v2, v3
    v_lshlrev_b32 v3, 4, v1
    s_cmp_eq_u32 s21, 16
    s_cselect_b64 vcc, -1, 0
    v_cndmask_b32 v17, v2, v3, vcc
    s_lshl_b32 s25, s20, 6
    s_mul_i32 s23, s12, {8*40960}
    s_add_u32 s25, s25, s23
    v_add_u32 v17, s25, v17
    v_lshrrev_b32 v2, 4, v1
    v_lshlrev_b32 v2, 7, v2
    v_and_b32 v3, 15, v1
    v_lshlrev_b32 v3, 2, v3
    v_add_u32 v2, v2, v3
    s_lshl_b32 s25, s12, 9
    s_add_u32 s25, s25, {RB}
    v_add_u32 v18, s25, v2
    v_lshlrev_b32 v19, 3, v1
    v_add_u32 v19, {RB}, v19
    v_bfe_u32 v2, v1, 2, 1
    v_lshlrev_b32 v2, 7, v2
    v_lshrrev_b32 v3, 3, v1
    v_lshlrev_b32 v3, 4, v3
    v_add_u32 v2, v2, v3
    v_and_b32 v3, 3, v1
    v_lshlrev_b32 v3, 2, v3
    v_add_u32 v2, v2, v3
    s_lshl_b32 s25, s20, 4
    s_lshr_b32 s23, s13, 4
    s_mul_i32 s23, s23, {16384 - 2560}
    s_add_u32 s25, s25, s23
    s_add_u32 s25, s25, 5120
    v_add_u32 v20, s25, v2
    v_and_b32 v3, 7, v1
    s_lshr_b32 s25, s21, 1
    v_cmp_gt_u32 vcc, s25, v3
    s_mov_b64 s[30:31], vcc
    s_add_u32 s40, s4, {UT0}
    s_addc_u32 s41, s5, 0
    s_mov_b32 s38, 0                 ; step
    s_mov_b32 s46, 0
    """)

def detect(A):
    lw = A.newlabel("detskip")
    A(f"""
    s_cmp_lg_u32 s13, 63
    s_cbranch_scc1 {lw}
    s_cmp_lg_u32 s12, 0
    s_cbranch_scc1 {lw}
    s_bitcmp1_b32 s3, 3
    s_cbranch_scc0 {lw}
    """)
    for half in range(2):
        A(f"s_mov_b32 s{52+half}, 0x7fffffff")
        for smp in range(6):
            off = half*8192 + (smp % 4)*16384 + 7680 + (smp//4)*128
            A(f"""
            v_mov_b32 v2, {off}
            s_memtime s[54:55]
            s_waitcnt lgkmcnt(0)
            global_load_dword v3, v2, s[4:5] sc1
            s_waitcnt vmcnt(0)
            s_memtime s[56:57]
            s_waitcnt lgkmcnt(0)
            s_sub_u32 s56, s56, s54
            s_min_u32 s{52+half}, s{52+half}, s56
            """)
    A(f"""
    s_cmp_lt_u32 s53, s52
    s_cselect_b32 s60, 3, 2
    v_mov_b32 v2, {F_DET}
    v_mov_b32 v3, s60
    global_store_dword v2, v3, s[10:11] sc1
    """)
    A.label(lw)

def det_wait(A):
    lp = A.newlabel("detw")
    A.label(lp)
    A(f"""
    v_mov_b32 v2, {F_DET}
    global_load_dword v3, v2, s[10:11] sc1
    s_waitcnt vmcnt(0)
    v_readfirstlane_b32 s60, v3
    """)
    A.guard()
    A(f"""
    s_cmp_eq_u32 s60, 0
    s_cbranch_scc1 {lp}
    s_and_b32 s25, s60, 1
    s_lshl_b32 s25, s25, 13
    s_add_u32 s34, s4, s25
    s_addc_u32 s35, s5, 0
    """)

def load_mem0(A):
    l = A.newlabel("m0")
    A(f"""
    s_load_dwordx2 s[42:43], s[0:1], {KA['mem0']}
    v_and_b32 v2, 7, v0
    v_mul_u32_u24 v2, 1280, v2
    v_lshrrev_b32 v3, 3, v0
    v_lshlrev_b32 v3, 4, v3
    v_add_u32 v2, v2, v3
    v_lshlrev_b32 v3, 4, v0
    s_waitcnt lgkmcnt(0)
    global_load_dwordx4 v[{SC}:{SC+3}], v2, s[42:43]
    global_load_dwordx4 v[{SC+4}:{SC+7}], v2, s[42:43] offset:512
    s_cmp_ge_u32 s12, 2
    s_cbranch_scc1 {l}
    """)
    A(f"""
    global_load_dwordx4 v[{SC+8}:{SC+11}], v2, s[42:43] offset:1024
    s_waitcnt vmcnt(0)
    v_add_u32 v2, {MEMB + 8192}, v3
    ds_write_b128 v2, v[{SC+8}:{SC+11}]
    """)
    A.label(l)
    A(f"""
    s_waitcnt vmcnt(0)
    v_add_u32 v2, {MEMB}, v3
    ds_write_b128 v2, v[{SC}:{SC+3}]
    ds_write_b128 v2, v[{SC+4}:{SC+7}] offset:4096
    s_waitcnt lgkmcnt(0)
    """)

def dma_U(A):
    l16 = A.newlabel("u16"); dn = A.newlabel("ud")
    A(f"s_mov_b32 s44, s40\ns_mov_b32 s45, s41\ns_cmp_eq_u32 s21, 16\ns_cbranch_scc1 {l16}")
    for i in range(4):
        A(f"s_add_u32 m0, s27, {i*1024}\ns_nop 0\nglobal_load_lds_dwordx4 v17, s[44:45] sc1")
        if i < 3: A.addbase(44, 2*40960)
    A(f"s_branch {dn}")
    A.label(l16)
    for i in range(8):
        A(f"s_add_u32 m0, s27, {i*1024}\ns_nop 0\nglobal_load_lds_dwordx4 v17, s[44:45] sc1")
        if i < 7: A.addbase(44, 40960)
    A.label(dn)
    A.addbase(40, 32*40960)

def e1_poll(A, tag, opts, after_issue=None, n_after=0):
    d1 = opts.get('d1', 8)
    s = SC
    if d1: A(f"s_sleep {d1}")
    A(f"""
    global_load_dwordx4 v[{s}:{s+3}], v4, s[34:35] sc1
    global_load_dwordx4 v[{s+4}:{s+7}], v4, s[34:35] offset:1024 sc1
    global_load_dwordx2 v[{s+8}:{s+9}], v5, s[34:35] sc1
    """)
    if after_issue: after_issue()
    A(f"s_waitcnt vmcnt({n_after})")
    A.label(f".Le1c{tag}")
    maxtree(A, range(s, s+10), s+10)
    A(f"s_cbranch_vccz .Le1ok{tag}")
    A(f"""
    global_load_dwordx4 v[{s}:{s+3}], v4, s[34:35] sc1
    global_load_dwordx4 v[{s+4}:{s+7}], v4, s[34:35] offset:1024 sc1
    global_load_dwordx2 v[{s+8}:{s+9}], v5, s[34:35] sc1
    s_waitcnt vmcnt(0)
    """)
    A.guard()
    A(f"s_branch .Le1c{tag}")
    A.label(f".Le1ok{tag}")
    A(f"""
    ds_write_b128 v6, v[{s}:{s+3}]
    ds_write_b128 v6, v[{s+4}:{s+7}] offset:1024
    ds_write_b64 v7, v[{s+8}:{s+9}]
    """)

def smf_stream(A, items, aaddr, abase, acc_of, ring0, wring0):
    ops = []
    for ki, (off, lst) in enumerate(items):
        for (fid, acc) in lst: ops.append((ki, fid, acc))
    lds_ops = [i for i, o in enumerate(ops) if o[1] >= 51]
    q = []
    def rdA(ki):
        r = ring0 + 4*(ki % 3)
        A(f"ds_read_b128 v[{r}:{r+3}], v{aaddr} offset:{abase + items[ki][0]}")
        q.append(('A', ki))
    def rdW(n):
        fid = ops[lds_ops[n]][1]
        r = wring0 + 8*(n % 2)
        A(f"ds_read_b128 v[{r}:{r+3}], v10 offset:{WL + (fid-51)*2048}")
        A(f"ds_read_b128 v[{r+4}:{r+7}], v10 offset:{WL + (fid-51)*2048 + 1024}")
        q.append(('W', n)); q.append(('W', n))
    def need(tag):
        if tag not in q: return
        last = max(i for i, t in enumerate(q) if t == tag)
        A(f"s_waitcnt lgkmcnt({len(q) - 1 - last})")
        del q[:last+1]
    rdA(0); rdA(1)
    nextA = 2; nextW = 0
    for n in range(min(2, len(lds_ops))): rdW(n); nextW += 1
    curk = -1; wn = 0
    for i, (ki, fid, acc) in enumerate(ops):
        if ki != curk:
            curk = ki
            need(('A', ki))
            if nextA < len(items):
                rdA(nextA); nextA += 1
        ar_ = ring0 + 4*(ki % 3)
        if fid >= 51:
            need(('W', wn))
            wr = wring0 + 8*(wn % 2)
            ws = f"v[{wr}:{wr+7}]"
        else:
            ws = wreg(fid)[0]
        A(f"v_smfmac_f32_16x16x64_bf16 v[{acc}:{acc+3}], v[{ar_}:{ar_+3}], {ws}, v9")
        if fid >= 51:
            wn += 1
            if nextW < len(lds_ops):
                rdW(nextW); nextW += 1

def e2_combine(A, tag, opts, pre_sleep):
    s = SC
    U0 = s + 28; ACC = s + 60; T = s + 64
    A("s_waitcnt vmcnt(0)")
    l16 = A.newlabel("uf16"); dn = A.newlabel("ufd")
    A(f"s_cmp_eq_u32 s21, 16\ns_cbranch_scc1 {l16}")
    for W64, lab in ((512, None), (1024, l16)):
        if lab: A.label(lab)
        for tk in range(4):
            A(f"ds_read_b128 v[{U0+8*tk}:{U0+8*tk+3}], v15 offset:{2*tk*W64}")
            A(f"ds_read_b128 v[{U0+8*tk+4}:{U0+8*tk+7}], v16 offset:{2*tk*W64}")
        if not lab: A(f"s_branch {dn}")
    A.label(dn)
    for i in range(4): A(f"v_mov_b32 v{ACC+i}, 0")
    if pre_sleep: A(f"s_sleep {pre_sleep}")
    A.label(f".Le2{tag}")
    A(f"""
    global_load_dwordx4 v[{s}:{s+3}], v11, s[34:35] sc1
    global_load_dwordx4 v[{s+4}:{s+7}], v11, s[34:35] offset:1280 sc1
    global_load_dwordx4 v[{s+8}:{s+11}], v11, s[34:35] offset:2560 sc1
    global_load_dwordx4 v[{s+12}:{s+15}], v11, s[34:35] offset:3840 sc1
    global_load_dwordx2 v[{s+16}:{s+17}], v12, s[34:35] sc1
    global_load_dwordx2 v[{s+18}:{s+19}], v12, s[34:35] offset:640 sc1
    global_load_dwordx4 v[{s+20}:{s+23}], v13, s[34:35] sc1
    global_load_dwordx4 v[{s+24}:{s+27}], v14, s[34:35] sc1
    s_waitcnt vmcnt(0)
    """)
    maxtree(A, range(s, s+28), T)
    A.guard()
    A(f"s_cbranch_vccnz .Le2{tag}")
    A("s_waitcnt lgkmcnt(0)")
    for tk in range(4):
        A(f"v_smfmac_f32_16x16x64_bf16 v[{ACC}:{ACC+3}], v[{s+4*tk}:{s+4*tk+3}], v[{U0+8*tk}:{U0+8*tk+7}], v9")
    A(f"v_smfmac_f32_16x16x64_bf16 v[{ACC}:{ACC+3}], v[{s+16}:{s+19}], v[{s+20}:{s+27}], v9")
    A(f"""
    s_add_u32 s34, s34, {CH_STEP}
    s_addc_u32 s35, s35, 0
    s_add_u32 s38, s38, 1
    s_and_b32 s25, s38, 1
    s_cmp_eq_u32 s25, 0
    s_cselect_b32 s25, 8192, 0
    s_xor_b32 s34, s34, s25
    s_nop 1
    v_add_f32 v{T}, v{ACC}, v{ACC+1}
    v_add_f32 v{T+1}, v{ACC+2}, v{ACC+3}
    ds_write_b32 v18, v{T}
    ds_write_b32 v18, v{T+1} offset:64
    s_waitcnt lgkmcnt(0)
    s_barrier
    s_cmp_lg_u32 s12, 0
    s_cbranch_scc1 .Lmp{tag}
    ds_read_b64 v[{s}:{s+1}], v19
    ds_read_b64 v[{s+2}:{s+3}], v19 offset:512
    ds_read_b64 v[{s+4}:{s+5}], v19 offset:1024
    ds_read_b64 v[{s+6}:{s+7}], v19 offset:1536
    s_waitcnt lgkmcnt(2)
    v_add_f32 v{s}, v{s}, v{s+2}
    v_add_f32 v{s+1}, v{s+1}, v{s+3}
    s_waitcnt lgkmcnt(0)
    v_add_f32 v{s+4}, v{s+4}, v{s+6}
    v_add_f32 v{s+5}, v{s+5}, v{s+7}
    v_add_f32 v{s}, v{s}, v{s+4}
    v_add_f32 v{s+1}, v{s+1}, v{s+5}
    v_cvt_pk_bf16_f32 v{s}, v{s}, v{s+1}
    s_mov_b64 exec, s[30:31]
    global_store_dword v20, v{s}, s[34:35] sc1
    s_mov_b64 exec, -1
    """)
    A.label(f".Lmp{tag}")

def gen_V(A, opts):
    A.comment("==== chain V role")
    A(f"""
    s_load_dwordx4 s[48:51], s[0:1], {KA['Wv']}
    s_lshr_b32 s18, s13, 1
    s_mul_i32 s16, s18, 384
    s_mul_i32 s17, s18, {192*1280}
    s_waitcnt lgkmcnt(0)
    s_add_u32 s48, s48, s16
    s_addc_u32 s49, s49, 0
    s_add_u32 s50, s50, s17
    s_addc_u32 s51, s51, 0
    """)
    seq = [('v', t, j) for t in range(10) for j in range(3)] + [('o', u, j) for u in range(3) for j in range(10)]
    ldsset = [5, 11, 17, 23, 29, 36, 43, 50, 57]
    fid = {}; a = 0; b = 51
    for i, k in enumerate(seq):
        if i in ldsset: fid[k] = b; b += 1
        else: fid[k] = a; a += 1
    load_sparse_weights(A, 50, 1280, 192, 10, lambda w, j: 10*w + j, 10, lambda t, j: fid[('o', t, j)], frag_dest, 64, 2)
    load_sparse_weights(A, 48, 12288, 640, 3, lambda w, j: 3*w + j, 3, lambda t, j: fid[('v', t, j)], frag_dest, 128, 3)
    spill_lds_frags(A)
    A.stamp(1)
    common_setup(A, True, opts)
    s = SC
    A(f"""
    v_and_b32 v2, 15, v1
    v_lshrrev_b32 v3, 3, v2
    v_lshlrev_b32 v3, 7, v3
    v_and_b32 v2, 7, v2
    v_lshlrev_b32 v2, 1, v2
    v_add_u32 v2, v2, v3
    v_lshrrev_b32 v3, 4, v1
    v_lshlrev_b32 v3, 5, v3
    v_add_u32 v2, v2, v3
    s_mul_i32 s25, s12, 768
    s_add_u32 s25, s25, {QF}
    v_add_u32 v21, s25, v2
    v_add_u32 v22, {QF - MEMB}, v8
    s_lshl_b32 s47, s18, 2
    s_add_u32 s47, s47, {F_Y}
    """)
    for m in range(3):
        A(f"""
        s_mul_i32 s25, s12, 160
        v_add_u32 v3, s25, v1
        v_add_u32 v3, {64*m}, v3
        v_mul_u32_u24 v{s}, 1639, v3
        v_lshrrev_b32 v{s}, 16, v{s}
        v_mul_u32_u24 v{s+1}, 40, v{s}
        v_sub_u32 v{s+2}, v3, v{s+1}
        v_and_b32 v{s+3}, 0xf8, v{s+2}
        v_cmp_eq_u32 vcc, 16, v{s+3}
        v_mov_b32 v{s}, 8
        s_nop 0
        v_cndmask_b32 v{s+3}, v{s+3}, v{s}, vcc
        v_cmp_eq_u32 vcc, 8, v{s+3}
        v_mov_b32 v{s+4}, 16
        s_nop 0
        v_cndmask_b32 v{s}, v{s}, v{s+4}, vcc     ; width
        v_add_u32 v{s+1}, v{s+1}, v{s+3}          ; col0
        v_sub_u32 v{s+2}, v3, v{s+1}
        v_lshlrev_b32 v{s+2}, 4, v{s+2}
        v_lshlrev_b32 v{s+1}, 9, v{s+1}
        v_add_u32 v{s+2}, v{s+2}, v{s+1}
        v_lshlrev_b32 v{s}, 4, v{s}
        v_mul_lo_u32 v{s}, v{s}, s18
        v_add_u32 v{23+m}, v{s+2}, v{s}
        v_add_u32 v{23+m}, 32768, v{23+m}
        """)
        l2p(A, 23+m, 2)
    det_wait(A)
    load_mem0(A)
    A("s_mov_b32 s33, 1")
    A.wait_prog(F_U, 32, 33, 46)
    dma_U(A)
    A.stamp(2)
    A("s_branch .LV_go")
    A.label(".LV_step")
    ACC = s + 12
    RING = s
    WR = s + 52
    def pre():
        sk = A.newlabel("vnu")
        A(f"s_cmp_ge_u32 s38, 63\ns_cbranch_scc1 {sk}")
        dma_U(A)
        A.label(sk)
    e1_poll(A, "V", opts)
    pre()
    A.label(".LV_go")
    for i in range(40): A(f"v_mov_b32 v{ACC+i}, 0")
    A("s_waitcnt lgkmcnt(0)\ns_barrier")
    A.publish(47, 38)
    items = [(t*1024, [(fid[('v', t, j)], ACC + 4*j) for j in range(3)]) for t in range(10)]
    smf_stream(A, items, 8, 0, None, RING, WR)
    A("s_nop 7")
    for j in range(3):
        a = ACC + 4*j
        A(f"""
        v_add_f32 v{a}, v{a}, v{a+1}
        v_add_f32 v{a+2}, v{a+2}, v{a+3}
        v_cvt_pk_bf16_f32 v{a}, v{a}, v{a+2}
        ds_write_b16 v21, v{a} offset:{256*j}
        ds_write_b16_d16_hi v21, v{a} offset:{256*j+16}
        """)
    for i in range(12): A(f"v_mov_b32 v{ACC+i}, 0")
    A("s_waitcnt lgkmcnt(0)\ns_barrier")
    items = [(u*1024, [(fid[('o', u, j)], ACC + 4*j) for j in range(10)]) for u in range(3)]
    smf_stream(A, items, 22, 0, None, RING, WR)
    A("s_nop 7")
    O = s
    for j in range(10):
        a = ACC + 4*j
        A(f"""
        v_add_f32 v{a}, v{a}, v{a+1}
        v_add_f32 v{a+2}, v{a+2}, v{a+3}
        v_cvt_pk_bf16_f32 v{O+j}, v{a}, v{a+2}
        """)
    A("s_nop 1")
    for m in range(3):
        r = O + 4*m
        A(f"""
        v_permlane32_swap_b32 v{r}, v{r+2}
        v_permlane32_swap_b32 v{r+1}, v{r+3}
        s_nop 1
        v_permlane16_swap_b32 v{r}, v{r+1}
        v_permlane16_swap_b32 v{r+2}, v{r+3}
        """)
        if m == 2: A("s_mov_b32 exec_hi, 0")
        A(f"s_nop 0\nglobal_store_dwordx4 v{23+m}, v[{r}:{r+3}], s[34:35] sc1")
    A(f"""
    s_mov_b64 exec, -1
    s_cmp_ge_u32 s38, 63
    s_cbranch_scc1 .LV_fin
    s_add_u32 s33, s38, 2
    s_min_u32 s33, s33, 63
    """)
    A.wait_prog(F_U, 32, 33, 46)
    e2_combine(A, "V", opts, opts.get('d2v', 0))
    A("s_branch .LV_step")
    A.label(".LV_fin")
    A("s_waitcnt vmcnt(0)\ns_barrier\ns_mov_b32 s38, 64")
    A.publish(47, 38)
    A.stamp(3)
    A("s_branch .Lend")

def gen_S(A, opts):
    A.comment("==== chain S role")
    A(f"""
    s_load_dwordx4 s[48:51], s[0:1], {KA['Wq']}
    s_lshr_b32 s18, s13, 1
    s_mul_i32 s16, s18, 384
    s_waitcnt lgkmcnt(0)
    s_add_u32 s48, s48, s16
    s_addc_u32 s49, s49, 0
    s_add_u32 s50, s50, s16
    s_addc_u32 s51, s51, 0
    """)
    seq = [(t, j) for t in range(10) for j in range(6)]
    ldsset = [5, 11, 17, 23, 29, 35, 41, 47, 53]
    fid = {}; a = 0; b = 51
    for i, k in enumerate(seq):
        if i in ldsset: fid[k] = b; b += 1
        else: fid[k] = a; a += 1
    load_sparse_weights(A, 48, 12288, 640, 3, lambda w, j: 3*w + j, 3, lambda t, j: fid[(t, j)], frag_dest, 128, 3)
    load_sparse_weights(A, 50, 12288, 640, 3, lambda w, j: 3*w + j, 3, lambda t, j: fid[(t, 3+j)], frag_dest, 128, 3)
    spill_lds_frags(A)
    A.stamp(1)
    common_setup(A, False, opts)
    s = SC
    A(f"""
    v_and_b32 v2, 15, v1               ; n
    v_lshrrev_b32 v3, 3, v2            ; g>>1
    v_lshlrev_b32 v{s}, 8, v3
    v_bfe_u32 v3, v2, 1, 1             ; half
    v_lshlrev_b32 v3, 4, v3
    v_add_u32 v{s}, v{s}, v3
    v_bfe_u32 v3, v2, 2, 1             ; g&1
    v_lshlrev_b32 v3, 3, v3
    v_add_u32 v{s}, v{s}, v3
    v_and_b32 v3, 1, v2
    v_lshlrev_b32 v3, 1, v3
    v_add_u32 v{s}, v{s}, v3
    v_lshrrev_b32 v3, 4, v1            ; g' -> row 2g' * 32
    v_lshlrev_b32 v{s+2}, 6, v3
    v_add_u32 v{s}, v{s}, v{s+2}
    v_lshrrev_b32 v{s+1}, 2, v2        ; g
    v_lshlrev_b32 v{s+1}, 8, v{s+1}
    v_lshlrev_b32 v{s+2}, 5, v3        ; i*16 = 2g'*16
    v_add_u32 v{s+1}, v{s+1}, v{s+2}
    v_and_b32 v3, 3, v2
    v_lshlrev_b32 v3, 1, v3
    v_add_u32 v{s+1}, v{s+1}, v3
    """)
    for w in range(4):
        l = A.newlabel("qw")
        A(f"s_cmp_lg_u32 s12, {w}\ns_cbranch_scc1 {l}")
        for j in range(3):
            T = 3*w + j
            c, th = [(c, h) for c in range(6) for h in range(2) if PAIRS[c][h] == T][0]
            A(f"v_add_u32 v{21+j}, {QF + (c>>1)*1024 + (c&1)*512 + th*4}, v{s}")
            A(f"v_add_u32 v{24+j}, {KM + c*1024 + th*8}, v{s+1}")
        A.label(l)
    A(f"""
    v_lshlrev_b32 v27, 4, v1
    v_and_b32 v2, 15, v1
    v_lshrrev_b32 v3, 2, v2
    v_lshlrev_b32 v3, 2, v3
    v_and_b32 v{s}, 1, v2
    v_lshlrev_b32 v{s}, 1, v{s}
    v_add_u32 v3, v3, v{s}             ; tok
    v_and_b32 v{s}, 48, v1
    v_add_u32 v3, v3, v{s}             ; g*16+tok
    v_bfe_u32 v{s}, v2, 1, 1           ; tt
    v_mul_u32_u24 v{s}, 6144, v{s}
    v_lshlrev_b32 v28, 4, v3
    v_add_u32 v28, v28, v{s}
    v_lshlrev_b32 v29, 3, v3
    v_add_u32 v29, v29, v{s}
    v_add_u32 v29, 4096, v29
    s_lshr_b32 s25, s18, 3
    s_mul_i32 s25, s25, 16384
    s_and_b32 s23, s18, 7
    s_mul_i32 s23, s23, 640
    s_add_u32 s25, s25, s23
    s_and_b32 s23, s12, 1
    v_lshrrev_b32 v3, 4, v1
    v_lshlrev_b32 v3, 1, v3
    v_add_u32 v3, s23, v3              ; i
    v_lshrrev_b32 v{s}, 3, v2
    v_lshlrev_b32 v{s}, 8, v{s}
    v_lshlrev_b32 v{s+1}, 5, v3
    v_add_u32 v{s}, v{s}, v{s+1}
    v_and_b32 v{s+1}, 1, v2
    v_lshlrev_b32 v{s+1}, 4, v{s+1}
    v_add_u32 v{s}, v{s}, v{s+1}
    v_bfe_u32 v{s+1}, v2, 1, 2
    v_lshlrev_b32 v{s+1}, 2, v{s+1}
    v_add_u32 v{s}, v{s}, v{s+1}
    v_add_u32 v30, s25, v{s}
    v_lshlrev_b32 v{s}, 4, v3
    v_bfe_u32 v{s+1}, v2, 1, 1
    v_lshlrev_b32 v{s+1}, 3, v{s+1}
    v_add_u32 v{s}, v{s}, v{s+1}
    v_bfe_u32 v{s+1}, v2, 2, 1
    v_lshlrev_b32 v{s+1}, 2, v{s+1}
    v_add_u32 v{s}, v{s}, v{s+1}
    v_add_u32 v{s}, 512, v{s}
    v_add_u32 v31, s25, v{s}
    v_and_b32 v3, 9, v1
    v_cmp_eq_u32 vcc, 0, v3
    s_mov_b64 s[62:63], vcc            ; n even & n<8
    v_cmp_gt_u32 vcc, 8, v2
    s_mov_b64 s[64:65], vcc            ; n<8
    s_mul_i32 s25, s18, 12288
    s_add_u32 s23, s25, {K0}
    s_add_u32 s66, s4, s23
    s_addc_u32 s67, s5, 0
    s_add_u32 s23, s25, {Q0}
    s_add_u32 s68, s4, s23
    s_addc_u32 s69, s5, 0
    s_mul_i32 s25, s18, 2560
    s_add_u32 s25, s25, {PT0}
    s_add_u32 s70, s4, s25
    s_addc_u32 s71, s5, 0
    s_lshl_b32 s47, s18, 2
    s_add_u32 s72, s10, s47
    s_addc_u32 s73, s11, 0
    s_add_u32 s47, s47, {F_S}
    s_mov_b32 s74, 0
    s_mov_b32 s75, {KQB}
    s_mov_b32 s76, {KQB}
    s_mul_i32 s77, s12, 3072
    """)
    def waitKQ():
        lp = A.newlabel("wkq"); done = A.newlabel("wkqd")
        A(f"s_cmp_ge_u32 s74, s33\ns_cbranch_scc1 {done}\nv_mov_b32 v2, 0")
        A.label(lp)
        A(f"""
        global_load_dword v3, v2, s[72:73] offset:{F_Q} sc1
        global_load_dword v{s+70}, v2, s[72:73] offset:{F_K} sc1
        s_waitcnt vmcnt(0)
        v_min_u32 v3, v3, v{s+70}
        s_nop 0
        v_readfirstlane_b32 s74, v3
        s_nop 3
        s_cmp_ge_u32 s74, s33
        s_cbranch_scc1 {done}
        s_sleep 2
        """)
        A.guard()
        A(f"s_branch {lp}")
        A.label(done)
    def dma_KQ():
        A(f"s_add_u32 s25, s76, s77\nv_add_u32 v2, s77, v27\ns_mov_b32 m0, s25\ns_nop 0")
        for i in range(3): A(f"global_load_lds_dwordx4 v2, s[66:67] offset:{i*1024} sc1")
        A(f"s_add_u32 m0, s25, 12288\ns_nop 0")
        for i in range(3): A(f"global_load_lds_dwordx4 v2, s[68:69] offset:{i*1024} sc1")
        A.addbase(66, 32*12288); A.addbase(68, 32*12288)
        A(f"s_xor_b32 s76, s76, {KQB ^ (KQB + 24576)}")
    det_wait(A)
    load_mem0(A)
    A("s_mov_b32 s33, 1")
    A.wait_prog(F_U, 32, 33, 46)
    dma_U(A)
    A("s_mov_b32 s33, 2")
    waitKQ()
    dma_KQ()
    A("s_waitcnt vmcnt(0)")
    dma_KQ()
    A.stamp(2)
    A("s_branch .LS_go")
    A.label(".LS_step")
    ACC = s + 12; RING = s; WR = s + 36
    e1_poll(A, "S", opts)
    sk = A.newlabel("snu")
    A(f"s_cmp_ge_u32 s38, 63\ns_cbranch_scc1 {sk}")
    dma_U(A)
    dma_KQ()
    A.label(sk)
    A.label(".LS_go")
    for i in range(24): A(f"v_mov_b32 v{ACC+i}, 0")
    A("s_waitcnt lgkmcnt(0)\ns_barrier")
    A.publish(47, 38)
    items = [(t*1024, [(fid[(t, j)], ACC + 4*j) for j in range(6)]) for t in range(10)]
    smf_stream(A, items, 8, 0, None, RING, WR)
    A("s_nop 7")
    for j in range(6):
        a = ACC + 4*j
        A(f"""
        v_add_f32 v{a}, v{a}, v{a+1}
        v_add_f32 v{a+2}, v{a+2}, v{a+3}
        v_cvt_pk_bf16_f32 v{a}, v{a}, v{a+2}
        ds_write_b16 v{21+j}, v{a}
        ds_write_b16_d16_hi v{21+j}, v{a} offset:{32 if j < 3 else 16}
        """)
    A(f"""
    s_waitcnt lgkmcnt(0)
    s_barrier
    s_cmp_ge_u32 s12, 2
    s_cbranch_scc1 .LS_tok
    s_cmp_ge_u32 s38, 63
    s_cbranch_scc1 .LS_fin
    """)
    CS = f2h(192**-0.5 * 1.4426950408889634)
    SA = s + 56
    A(f"v_add_u32 v2, s75, v28\nv_add_u32 v3, s75, v29\nv_add_u32 v{s+68}, {QF}, v27")
    for i in range(12): A(f"v_mov_b32 v{SA+i}, 0")
    def rd(u):
        b = s + 28*(u % 2)
        A(f"ds_read_b128 v[{b}:{b+3}], v{s+68} offset:{u*1024}")
        A(f"ds_read_b128 v[{b+4}:{b+7}], v{s+68} offset:{KM - QF + 2*u*1024}")
        A(f"ds_read_b128 v[{b+8}:{b+11}], v{s+68} offset:{KM - QF + (2*u+1)*1024}")
        for ab in range(2):
            for hc in range(2):
                c = 2*u + hc
                r = b + 12 + ab*8 + hc*4
                if c < 4:
                    A(f"ds_read_b128 v[{r}:{r+3}], v2 offset:{c*1024 + ab*16}")
                else:
                    o = (c-4)*1024 + ab*8
                    A(f"ds_read_b64 v[{r}:{r+1}], v3 offset:{o}")
                    A(f"ds_read_b64 v[{r+2}:{r+3}], v3 offset:{o+512}")
    def mm(u):
        b = s + 28*(u % 2)
        for t in range(3):
            A(f"v_smfmac_f32_16x16x64_bf16 v[{SA+4*t}:{SA+4*t+3}], v[{b}:{b+3}], v[{b+4+8*t}:{b+11+8*t}], v9")
    rd(0); rd(1)
    A("s_waitcnt lgkmcnt(7)")
    mm(0)
    rd(2)
    A("s_waitcnt lgkmcnt(11)")
    mm(1)
    A("s_waitcnt lgkmcnt(0)")
    mm(2)
    A("s_cmp_eq_u32 s12, 1\ns_cbranch_scc1 .LS_p1")
    for p in range(2):
        if p: A.label(".LS_p1")
        A("s_nop 6")
        x = s
        for t in range(3):
            A(f"v_add_f32 v{x+t}, v{SA+4*t+2*p}, v{SA+4*t+2*p+1}")
        if not p: A("s_branch .LS_sm")
    A.label(".LS_sm")
    x = s
    A(f"""
    v_mov_b32 v{x+3}, 0xff800000
    v_cndmask_b32 v{x}, v{x+3}, v{x}, s[64:65]
    v_max3_f32 v{x+3}, v{x}, v{x+1}, v{x+2}
    """)
    A.red16(x+3, "v_max_f32")
    A(f"""
    v_mul_f32 v{x+3}, {CS}, v{x+3}
    v_mov_b32 v{x+4}, {CS}
    v_fma_f32 v{x}, v{x}, v{x+4}, -v{x+3}
    v_fma_f32 v{x+1}, v{x+1}, v{x+4}, -v{x+3}
    v_fma_f32 v{x+2}, v{x+2}, v{x+4}, -v{x+3}
    v_exp_f32 v{x}, v{x}
    v_exp_f32 v{x+1}, v{x+1}
    v_exp_f32 v{x+2}, v{x+2}
    s_nop 0
    v_add_f32 v{x+3}, v{x}, v{x+1}
    v_add_f32 v{x+3}, v{x+3}, v{x+2}
    """)
    A.red16(x+3, "v_add_f32")
    A(f"""
    v_rcp_f32 v{x+3}, v{x+3}
    s_nop 0
    v_mul_f32 v{x+1}, v{x+1}, v{x+3}
    v_mul_f32 v{x+2}, v{x+2}, v{x+3}
    v_mul_f32 v{x}, v{x}, v{x+3}
    v_cvt_pk_bf16_f32 v{x+1}, v{x+1}, v{x+2}
    global_store_dword v30, v{x+1}, s[34:35] sc1
    v_mov_b32_dpp v{x+4}, v{x} quad_perm:[1,0,3,2] row_mask:0xf bank_mask:0xf
    v_cvt_pk_bf16_f32 v{x}, v{x}, v{x+4}
    s_mov_b64 exec, s[62:63]
    global_store_dword v31, v{x}, s[34:35] sc1
    s_mov_b64 exec, -1
    s_branch .LS_e2
    """)
    A.label(".LS_tok")
    TA = s + 56
    A(f"""
    s_sub_u32 s25, s12, 2
    s_mul_i32 s25, s25, 6144
    s_add_u32 s25, s25, s75
    s_add_u32 s25, s25, 12288
    v_add_u32 v2, s75, v27                 ; K chunks
    v_lshrrev_b32 v3, 1, v27
    v_add_u32 v{s+69}, s25, v3
    v_add_u32 v3, s75, v3                  ; K singles
    v_add_u32 v{s+68}, s25, v27            ; Q chunks
    v_add_u32 v{s+70}, {KM}, v27
    """)
    def rdt(c):
        b = s + 16*(c % 3)
        A(f"ds_read_b128 v[{b}:{b+3}], v{s+70} offset:{c*1024}")
        if c < 4:
            A(f"ds_read_b128 v[{b+4}:{b+7}], v2 offset:{c*1024}")
            A(f"ds_read_b128 v[{b+8}:{b+11}], v2 offset:{6144 + c*1024}")
            A(f"ds_read_b128 v[{b+12}:{b+15}], v{s+68} offset:{c*1024}")
        else:
            o = 8 + 2*(c-4)
            A(f"ds_read2st64_b64 v[{b+4}:{b+7}], v3 offset0:{o} offset1:{o+1}")
            A(f"ds_read2st64_b64 v[{b+8}:{b+11}], v3 offset0:{o+12} offset1:{o+13}")
            A(f"ds_read2st64_b64 v[{b+12}:{b+15}], v{s+69} offset0:{o} offset1:{o+1}")
    rdt(0); rdt(1)
    for c in range(6):
        if c + 2 < 6:
            rdt(c+2); A("s_waitcnt lgkmcnt(8)")
        else:
            A(f"s_waitcnt lgkmcnt({4*(5-c)})")
        b = s + 16*(c % 3)
        for t in range(3):
            a = TA + 4*t
            cs = "0" if c == 0 else f"v[{a}:{a+3}]"
            A(f"v_mfma_f32_16x16x32_bf16 v[{a}:{a+3}], v[{b+4*t}:{b+4*t+3}], v[{b+12}:{b+15}], {cs}")
    x = s
    A(f"""
    s_sub_u32 s25, s12, 2
    s_lshl_b32 s25, s25, 4
    v_and_b32 v{x}, 15, v1
    v_add_u32 v{x}, s25, v{x}              ; q
    v_lshrrev_b32 v{x+1}, 4, v1
    v_lshlrev_b32 v{x+1}, 2, v{x+1}
    v_sub_u32 v{x}, v{x}, v{x+1}           ; q-4g (signed)
    v_mov_b32 v{x+2}, 0xff800000
    v_cmp_gt_u32 vcc, 32, v1
    s_nop 1
    """)
    for r in range(4): A(f"v_cndmask_b32 v{TA+r}, v{x+2}, v{TA+r}, vcc")
    for tt in range(2):
        for r in range(4):
            A(f"v_cmp_le_i32 vcc, {16*tt + r}, v{x}\ns_nop 1\nv_cndmask_b32 v{TA+4+4*tt+r}, v{x+2}, v{TA+4+4*tt+r}, vcc")
    A(f"v_max3_f32 v{x+3}, v{TA}, v{TA+1}, v{TA+2}")
    for i in range(3, 11, 2): A(f"v_max3_f32 v{x+3}, v{x+3}, v{TA+i}, v{TA+i+1}")
    A(f"v_max_f32 v{x+3}, v{x+3}, v{TA+11}")
    def allred(v, t, op):
        for sw in ("v_permlane32_swap_b32", "v_permlane16_swap_b32"):
            A(f"v_mov_b32 v{t}, v{v}\ns_nop 1\n{sw} v{v}, v{t}\ns_nop 1\n{op} v{v}, v{v}, v{t}")
    allred(x+3, x+4, "v_max_f32")
    A(f"v_mul_f32 v{x+3}, {CS}, v{x+3}\nv_mov_b32 v{x+4}, {CS}")
    for i in range(12): A(f"v_fma_f32 v{TA+i}, v{TA+i}, v{x+4}, -v{x+3}")
    for i in range(12): A(f"v_exp_f32 v{TA+i}, v{TA+i}")
    A(f"s_nop 0\nv_add_f32 v{x+3}, v{TA}, v{TA+1}")
    for i in range(2, 12): A(f"v_add_f32 v{x+3}, v{x+3}, v{TA+i}")
    allred(x+3, x+4, "v_add_f32")
    A(f"v_rcp_f32 v{x+3}, v{x+3}\ns_nop 0")
    for i in range(12): A(f"v_mul_f32 v{TA+i}, v{TA+i}, v{x+3}")
    for i in range(6): A(f"v_cvt_pk_bf16_f32 v{x+8+i}, v{TA+2*i}, v{TA+2*i+1}")
    A(f"""
    s_sub_u32 s25, s12, 2
    s_lshl_b32 s23, s25, 10
    v_add_u32 v2, s23, v27
    global_store_dwordx4 v2, v[{x+10}:{x+13}], s[70:71] sc1
    v_and_b32 v3, 15, v1
    v_lshlrev_b32 v3, 4, v3
    v_lshrrev_b32 v2, 4, v1
    v_lshlrev_b32 v2, 3, v2
    v_add_u32 v2, v2, v3
    s_lshl_b32 s23, s25, 8
    v_add_u32 v2, s23, v2
    s_mov_b32 exec_hi, 0
    global_store_dwordx2 v2, v[{x+8}:{x+9}], s[70:71] offset:2048 sc1
    s_mov_b64 exec, -1
    s_cmp_ge_u32 s38, 63
    s_cbranch_scc1 .LS_fin
    """)
    A.label(".LS_e2")
    A(f"""
    s_add_u32 s70, s70, {32*2560}
    s_addc_u32 s71, s71, 0
    s_xor_b32 s75, s75, {KQB ^ (KQB + 24576)}
    s_add_u32 s33, s38, 2
    s_min_u32 s33, s33, 63
    """)
    A.wait_prog(F_U, 32, 33, 46)
    A("s_add_u32 s33, s38, 3\ns_min_u32 s33, s33, 64")
    waitKQ()
    e2_combine(A, "S", opts, opts.get('d2', 0))
    A("s_branch .LS_step")
    A.label(".LS_fin")
    A("s_waitcnt vmcnt(0)\ns_barrier\ns_mov_b32 s38, 64")
    A.publish(47, 38)
    A.stamp(3)
    A("s_branch .Lend")
```

```python
MB = 1 << 20
CH0 = 0
CH_STEP = 1 * MB
UT0 = 64 * MB
Q0 = 148 * MB
K0 = 172 * MB
V0 = 196 * MB
PT0 = 220 * MB
H1F0 = 226 * MB
YF0 = 229 * MB
X20 = 232 * MB
HH0 = 238 * MB
MODP0 = 245 * MB
FLG0 = 246 * MB
F_H1 = 0; F_Q = 256; F_K = 384; F_V = 512; F_U = 640; F_S = 768; F_Y = 896
F_B1 = 1024; F_LN = 1152; F_M1 = 1280; F_DET = 1408
FLG_BYTES = 2048
TS0 = 248 * MB
KA = dict(x=0, mem0=8, Wq=16, Wk=24, Wv=32, Wo=40, seg=48, Bx=56, w1=64, b1=72, w2=80, b2=88, c=96, wmod=104, out=112, dbg=120, ws=128)
PAIRS = [(0, 1), (3, 4), (6, 7), (9, 10), (2, 5), (8, 11)]
```

```python
import sys
from asmlib import *
from layout import *

GUARD = 400000
import struct
def f2h(x):
    return '0x%08x' % struct.unpack('<I', struct.pack('<f', x))[0]
GC1 = -2*1.4426950408889634*0.7978845608028654
GC2 = GC1*0.044715

class G(Asm):
    def guard(self):
        self(f"""
        s_add_u32 s14, s14, 1
        s_cmp_gt_u32 s14, {GUARD}
        s_cbranch_scc1 .Lend
        """)
    def base(self, sd, off, src=4):
        self(f"s_add_u32 s{sd}, s{src}, {off}\ns_addc_u32 s{sd+1}, s{src+1}, 0")
    def addbase(self, sd, x):
        self(f"s_add_u32 s{sd}, s{sd}, {x}\ns_addc_u32 s{sd+1}, s{sd+1}, 0")
    def wait_prog(self, foff, nwords, need_s, known_s, vt=2):
        lp = self.newlabel("wp"); done = self.newlabel("wpd")
        self(f"""
        s_cmp_ge_u32 s{known_s}, s{need_s}
        s_cbranch_scc1 {done}
        v_min_u32 v{vt}, {nwords-1}, v1
        v_lshlrev_b32 v{vt}, 2, v{vt}
        """)
        self.label(lp)
        self(f"""
        global_load_dword v{vt+1}, v{vt}, s[10:11] offset:{foff} sc1
        s_waitcnt vmcnt(0)
        """)
        if nwords > 1:
            for sh in (1, 2, 4, 8):
                if sh < nwords:
                    self(f"s_nop 1\nv_min_u32_dpp v{vt+1}, v{vt+1}, v{vt+1} row_ror:{sh} row_mask:0xf bank_mask:0xf")
        self(f"s_nop 1\nv_readlane_b32 s{known_s}, v{vt+1}, 0")
        if nwords > 16:
            self(f"v_readlane_b32 s15, v{vt+1}, 16\ns_nop 0\ns_min_u32 s{known_s}, s{known_s}, s15")
        if nwords > 32:
            self(f"v_readlane_b32 s15, v{vt+1}, 32\nv_readlane_b32 s16, v{vt+1}, 48\ns_nop 0\ns_min_u32 s{known_s}, s{known_s}, s15\ns_min_u32 s{known_s}, s{known_s}, s16")
        self(f"""
        s_cmp_ge_u32 s{known_s}, s{need_s}
        s_cbranch_scc1 {done}
        s_sleep 2
        """)
        self.guard()
        self(f"s_branch {lp}")
        self.label(done)
    def publish(self, foff_s, val_s, vt=2):
        sk = self.newlabel("pub")
        self(f"""
        s_cmp_lg_u32 s12, 0
        s_cbranch_scc1 {sk}
        v_mov_b32 v{vt}, s{foff_s}
        v_mov_b32 v{vt+1}, s{val_s}
        s_mov_b64 exec, 1
        global_store_dword v{vt}, v{vt+1}, s[10:11] sc1
        s_mov_b64 exec, -1
        """)
        self.label(sk)
    TS = 0
    def stamp(self, slot, slot_s=None):
        if not self.TS: return
        sk = self.newlabel("ts")
        self(f"""
        s_cmp_lg_u32 s12, 0
        s_cbranch_scc1 {sk}
        s_memrealtime s[98:99]
        s_memtime s[100:101]
        s_lshl_b32 s97, s2, 8
        s_add_u32 s97, s97, {TS0 + slot*4}
        v_mov_b32 v2, s97
        s_waitcnt lgkmcnt(0)
        v_mov_b32 v3, s98
        s_mov_b64 exec, 1
        global_store_dword v2, v3, s[4:5]
        v_mov_b32 v3, s100
        global_store_dword v2, v3, s[4:5] offset:128
        s_mov_b64 exec, -1
        """)
        self.label(sk)
    def red16(self, v, op="v_add_f32"):
        for sh in (8, 4, 2, 1):
            self(f"s_nop 1\n{op}_dpp v{v}, v{v}, v{v} row_ror:{sh} row_mask:0xf bank_mask:0xf")

def gen_k0(A, fill_bytes):
    kernel_begin(A, "prep_kernel")
    per = (fill_bytes + 256*4096 - 1)//(256*4096)
    A(f"""
    s_cmp_ge_u32 s2, 256
    s_cbranch_scc1 .Lk0_end
    s_load_dwordx4 s[4:7], s[0:1], {KA['c']}      ; c, wmod
    s_load_dwordx2 s[8:9], s[0:1], {KA['ws']}
    s_waitcnt lgkmcnt(0)
    s_cmp_ge_u32 s2, 240
    s_cbranch_scc1 .Lk0_fill
    ; cg = wg % 60, kq = wg / 60
    s_mul_i32 s10, s2, 1093
    s_lshr_b32 s10, s10, 16          ; kq
    s_mul_i32 s11, s10, 60
    s_sub_u32 s11, s2, s11           ; cg
    v_and_b32 v1, 7, v0              ; c8
    v_lshrrev_b32 v2, 3, v0          ; rg
    s_mul_i32 s12, s10, 160
    v_add_u32 v3, s12, v2            ; row0
    v_mul_u32_u24 v4, 7680, v3
    v_lshlrev_b32 v5, 4, v1
    v_add_u32 v4, v4, v5
    s_lshl_b32 s12, s11, 7
    v_add_u32 v4, s12, v4
    v_lshlrev_b32 v5, 1, v3          ; c offset
    """)
    for j in range(5):
        A(f"global_load_dwordx4 v[{16+4*j}:{19+4*j}], v4, s[6:7]")
        A(f"global_load_ushort v{40+j}, v5, s[4:5] offset:{64*j}")
        if j < 4: A(f"v_add_u32 v4, {32*7680}, v4")
    for i in range(8): A(f"v_mov_b32 v{48+i}, 0")
    A("s_waitcnt vmcnt(0)")
    for j in range(5):
        A(f"""
        v_lshlrev_b32 v{40+j}, 16, v{40+j}
        v_mul_f32 v6, {f2h(-1.4426950408889634)}, v{40+j}
        v_exp_f32 v6, v6
        s_nop 0
        v_add_f32 v6, 1.0, v6
        v_rcp_f32 v6, v6
        s_nop 0
        v_mul_f32 v6, v6, v{40+j}
        """)
        for q in range(4):
            r = 16+4*j+q
            A(f"""
            v_lshlrev_b32 v7, 16, v{r}
            v_and_b32 v8, 0xffff0000, v{r}
            v_fmac_f32 v{48+2*q}, v6, v7
            v_fmac_f32 v{49+2*q}, v6, v8
            """)
    A(f"""
    v_lshlrev_b32 v9, 5, v0
    ds_write_b128 v9, v[48:51]
    ds_write_b128 v9, v[52:55] offset:16
    s_waitcnt lgkmcnt(0)
    s_barrier
    v_and_b32 v1, 63, v0             ; col
    v_lshrrev_b32 v2, 6, v0
    v_lshlrev_b32 v3, 2, v1
    v_lshlrev_b32 v4, 11, v2
    v_add_u32 v3, v3, v4
    """)
    for i in range(8): A(f"ds_read_b32 v{16+i}, v3 offset:{256*i}")
    A("s_waitcnt lgkmcnt(0)")
    for i in range(1, 8): A(f"v_add_f32 v16, v16, v{16+i}")
    A(f"""
    v_lshlrev_b32 v3, 2, v0
    ds_write_b32 v3, v16 offset:8192
    s_waitcnt lgkmcnt(0)
    s_barrier
    v_cmp_gt_u32 vcc, 64, v0
    s_and_saveexec_b64 s[14:15], vcc
    s_cbranch_execz .Lk0_fill
    ds_read_b32 v16, v3 offset:8192
    ds_read_b32 v17, v3 offset:{8192+256}
    ds_read_b32 v18, v3 offset:{8192+512}
    ds_read_b32 v19, v3 offset:{8192+768}
    s_waitcnt lgkmcnt(0)
    v_add_f32 v16, v16, v17
    v_add_f32 v18, v18, v19
    v_add_f32 v16, v16, v18
    s_mul_i32 s12, s10, {3840*4}
    s_lshl_b32 s13, s11, 8
    s_add_u32 s12, s12, s13
    s_add_u32 s12, s12, {MODP0}
    v_add_u32 v3, s12, v3
    global_store_dword v3, v16, s[8:9]
    """)
    A.label(".Lk0_fill")
    A(f"""
    s_mov_b64 exec, -1
    v_mov_b32 v4, -1
    v_mov_b32 v5, -1
    v_mov_b32 v6, -1
    v_mov_b32 v7, -1
    s_mul_i32 s12, s2, {per*4096}
    v_lshlrev_b32 v1, 4, v0
    v_add_u32 v1, s12, v1
    s_mov_b32 s13, {per}
    """)
    A.label(".Lk0_fl")
    A(f"""
    global_store_dwordx4 v1, v[4:7], s[8:9]
    v_add_u32 v1, 4096, v1
    s_sub_u32 s13, s13, 1
    s_cmp_lg_u32 s13, 0
    s_cbranch_scc1 .Lk0_fl
    s_cmp_lg_u32 s2, 255
    s_cbranch_scc1 .Lk0_end
    v_mov_b32 v4, 0
    v_mov_b32 v5, 0
    v_lshlrev_b32 v1, 3, v0
    v_add_u32 v1, {FLG0}, v1
    global_store_dwordx2 v1, v[4:5], s[8:9]
    """)
    A.label(".Lk0_end")
    A("s_endpgm")

def mod_to_lds(A, first, count, ldsoff):
    n4 = count // 4
    it = 0
    while it * 256 < n4:
        rem = n4 - it*256
        A(f"v_lshlrev_b32 v2, 4, v0")
        if it: A(f"v_add_u32 v2, {it*4096}, v2")
        A(f"v_add_u32 v3, {MODP0 + first*4}, v2")
        if rem < 256:
            A(f"v_cmp_gt_u32 vcc, {rem}, v0\ns_and_saveexec_b64 s[16:17], vcc")
            sk = A.newlabel("m2l")
            A(f"s_cbranch_execz {sk}")
        for q in range(4):
            A(f"global_load_dwordx4 v[{4+4*q}:{7+4*q}], v3, s[4:5]")
            if q < 3: A(f"v_add_u32 v3, {3840*4}, v3")
        A("s_waitcnt vmcnt(0)")
        for i in range(4):
            A(f"v_add_f32 v{4+i}, v{4+i}, v{8+i}\nv_add_f32 v{12+i}, v{12+i}, v{16+i}\nv_add_f32 v{4+i}, v{4+i}, v{12+i}")
        A(f"v_add_u32 v2, {ldsoff}, v2\nds_write_b128 v2, v[4:7]")
        if rem < 256:
            A.label(sk)
            A("s_mov_b64 exec, -1")
        it += 1
    A("s_waitcnt lgkmcnt(0)\ns_barrier")

def gen_h1(A):
    A.comment("==== h1: LN(x)*(1+ca)+sa for segment s13")
    A(f"s_load_dwordx2 s[18:19], s[0:1], {KA['x']}")
    mod_to_lds(A, 0, 1280, 0)
    A(f"""
    v_and_b32 v2, 15, v1
    v_lshlrev_b32 v3, 5, v2
    """)
    for j in range(5):
        A(f"ds_read_b128 v[{64+8*j}:{67+8*j}], v3 offset:{512*j}")
        A(f"ds_read_b128 v[{68+8*j}:{71+8*j}], v3 offset:{512*j+16}")
        A(f"ds_read_b128 v[{104+8*j}:{107+8*j}], v3 offset:{2560+512*j}")
        A(f"ds_read_b128 v[{108+8*j}:{111+8*j}], v3 offset:{2560+512*j+16}")
    A(f"""
    v_lshrrev_b32 v4, 4, v1
    s_lshl_b32 s15, s12, 2
    v_add_u32 v4, s15, v4
    s_lshl_b32 s15, s13, 5
    v_add_u32 v5, s15, v4
    v_mul_u32_u24 v5, 1280, v5
    v_lshlrev_b32 v6, 4, v2
    v_add_u32 v5, v5, v6
    v_lshrrev_b32 v6, 2, v2
    v_lshlrev_b32 v6, 10, v6
    v_and_b32 v7, 3, v2
    v_lshlrev_b32 v7, 8, v7
    v_add_u32 v6, v6, v7
    v_lshlrev_b32 v7, 4, v4
    v_add_u32 v6, v6, v7
    s_mul_i32 s15, s13, 40960
    s_add_u32 s15, s15, {H1F0}
    v_add_u32 v6, s15, v6
    s_waitcnt lgkmcnt(0)
    """)
    for p in range(2):
        for j in range(5):
            A(f"global_load_dwordx4 v[{144+20*p+4*j}:{147+20*p+4*j}], v5, s[18:19] offset:{256*j}")
        if p == 0: A(f"v_add_u32 v5, {16*1280}, v5")
    for i in range(40): A(f"v_add_f32 v{104+i}, 1.0, v{104+i}")
    for p in range(2):
        A(f"s_waitcnt vmcnt({5 if p == 0 else 5})")
        src = 144+20*p
        for i in range(20):
            A(f"v_lshlrev_b32 v{16+2*i}, 16, v{src+i}\nv_and_b32 v{17+2*i}, 0xffff0000, v{src+i}")
        A("v_add_f32 v8, v16, v17")
        for i in range(2, 40): A(f"v_add_f32 v8, v8, v{16+i}")
        A.red16(8)
        A(f"v_mul_f32 v8, {f2h(1/640)}, v8")
        for i in range(40): A(f"v_sub_f32 v{16+i}, v{16+i}, v8")
        A("v_mul_f32 v9, v16, v16")
        for i in range(1, 40): A(f"v_fmac_f32 v9, v{16+i}, v{16+i}")
        A.red16(9)
        A(f"""
        v_mov_b32 v10, {f2h(1e-5)}
        v_fmac_f32 v10, {f2h(1/640)}, v9
        v_rsq_f32 v10, v10
        s_nop 0
        """)
        for i in range(40):
            A(f"v_mul_f32 v{16+i}, v{16+i}, v10\nv_fma_f32 v{16+i}, v{16+i}, v{104+i}, v{64+i}")
        for i in range(20):
            A(f"v_cvt_pk_bf16_f32 v{184+20*p+i}, v{16+2*i}, v{17+2*i}")
        for j in range(5):
            A(f"global_store_dwordx4 v6, v[{184+20*p+4*j}:{187+20*p+4*j}], s[4:5] sc1")
            A(f"v_add_u32 v6, 4096, v6")
    A(f"""
    s_waitcnt vmcnt(0)
    s_barrier
    s_lshl_b32 s15, s13, 2
    s_add_u32 s15, s15, {F_H1}
    s_mov_b32 s16, 1
    """)
    A.publish(15, 16)

def load_weights(A, wbase, RS, nrows, npanel, swz, frags, lds0=0, chunk_rows=128, nbuf=3, vt=2):
    nchunk = nrows // chunk_rows
    nblk = (chunk_rows // 8) * npanel
    assert nblk % 4 == 0
    per_wave = nblk // 4
    cbytes = nblk * 1024
    A(f"""
    v_lshrrev_b32 v{vt}, 3, v1           ; r
    v_mul_u32_u24 v{vt+1}, {RS}, v{vt}
    """)
    if swz == 'dense':
        A(f"""
        v_lshrrev_b32 v{vt+2}, 1, v{vt}
        v_lshrrev_b32 v{vt+3}, 2, v{vt}
        v_xor_b32 v{vt+2}, v{vt+2}, v{vt+3}
        v_and_b32 v{vt+2}, 1, v{vt+2}        ; f0
        """)
    else:
        A(f"""
        v_lshrrev_b32 v{vt+2}, 1, v{vt}
        v_and_b32 v{vt+2}, 3, v{vt+2}
        """)
    A(f"""
    v_lshlrev_b32 v{vt+2}, 1, v{vt+2}
    v_and_b32 v{vt+3}, 7, v1
    v_xor_b32 v{vt+2}, v{vt+2}, v{vt+3}
    v_xor_b32 v{vt+3}, {4 if swz == 'dense' else 0}, v{vt+2}
    v_lshlrev_b32 v{vt+2}, 4, v{vt+2}
    v_lshlrev_b32 v{vt+3}, 4, v{vt+3}
    v_add_u32 v{vt+2}, v{vt+2}, v{vt+1}
    v_add_u32 v{vt+3}, v{vt+3}, v{vt+1}
    """)
    rbw = chunk_rows // 8 // 4
    A(f"""
    s_mul_i32 s15, s12, {rbw*8*RS}
    s_add_u32 s{wbase}, s{wbase}, s15
    s_addc_u32 s{wbase+1}, s{wbase+1}, 0
    s_mul_i32 s17, s12, {rbw*npanel*1024}
    """)
    def issue(c):
        buf = lds0 + (c % nbuf) * cbytes
        for i in range(rbw):
            for p in range(npanel):
                A(f"s_add_u32 m0, s17, {buf + (i*npanel+p)*1024 - p*128}")
                A("s_nop 0")
                vsrc = vt+2 + (i & 1 if rbw % 2 == 0 else 0)
                assert rbw % 2 == 0 or swz != 'dense'
                A(f"global_load_lds_dwordx4 v{vsrc}, s[{wbase}:{wbase+1}] offset:{p*128}")
            A.addbase(wbase, 8*RS if i < rbw-1 else (chunk_rows - (rbw-1)*8)*RS)
    for c in range(min(nbuf-1, nchunk)): issue(c)
    for c in range(nchunk):
        inflight = min(nchunk, c + nbuf - 1) - (c+1)
        A(f"s_waitcnt vmcnt({inflight*per_wave})")
        A("s_barrier")
        if c + nbuf - 1 < nchunk: issue(c + nbuf - 1)
        frags(c, lds0 + (c % nbuf) * cbytes)
        A("s_waitcnt lgkmcnt(0)")
    A("s_barrier")

def tr_addr_dense(A, vd, npanel):
    A(f"""
    v_lshrrev_b32 v{vd+8}, 4, v1             ; g
    v_mul_u32_u24 v{vd+9}, {npanel*1024}, v{vd+8}
    v_bfe_u32 v{vd+10}, v1, 2, 2             ; r
    v_lshlrev_b32 v{vd+11}, 7, v{vd+10}
    v_add_u32 v{vd+9}, v{vd+9}, v{vd+11}
    v_and_b32 v{vd+11}, 3, v1
    v_lshlrev_b32 v{vd+11}, 3, v{vd+11}
    v_add_u32 v{vd+9}, v{vd+9}, v{vd+11}
    v_lshrrev_b32 v{vd+10}, 1, v{vd+10}      ; (r>>1)&1
    v_and_b32 v{vd+8}, 1, v{vd+8}
    v_lshlrev_b32 v{vd+8}, 1, v{vd+8}
    v_or_b32 v{vd+10}, v{vd+10}, v{vd+8}
    """)
    for pr in range(4):
        A(f"""
        v_xor_b32 v{vd+11}, {pr}, v{vd+10}
        v_lshlrev_b32 v{vd+11}, 5, v{vd+11}
        v_add_u32 v{vd+pr}, v{vd+9}, v{vd+11}
        """)

def gen_proj(A, tag, m1=False, opts={}):
    RS = 3072 if m1 else 12288
    VD = 8
    tr_addr_dense(A, VD, 3)
    for w in range(4):
        l = A.newlabel("pw")
        A(f"s_cmp_lg_u32 s12, {w}\ns_cbranch_scc1 {l}")
        for j in range(3):
            T = 3*w + j
            A(f"v_add_u32 v{20+2*j}, {(T>>2)*1024}, v{VD+(T&3)}")
            A(f"v_add_u32 v{21+2*j}, {(T>>2)*1024 + 512}, v{VD+((T&3)^1)}")
        A.label(l)
    def frags(c, buf):
        for k4 in range(4):
            ks = 4*c + k4
            for j in range(3):
                d = (ks*3 + j)*4
                off = buf + k4*4*3*1024
                assert off < 65536 or True
                A(f"ds_read_b64_tr_b16 a[{d}:{d+1}], v{26+2*j} offset:{k4*12288}")
                A(f"ds_read_b64_tr_b16 a[{d+2}:{d+3}], v{27+2*j} offset:{k4*12288}")
    def frags_w(c, buf):
        for j in range(6): A(f"v_add_u32 v{26+j}, {buf}, v{20+j}")
        frags(c, buf)
    load_weights(A, 20, RS, 640, 3, 'dense', frags_w)
    A.stamp(1)
    if m1:
        A(f"""
        s_load_dwordx2 s[28:29], s[0:1], {KA['b1']}
        v_lshrrev_b32 v2, 4, v1
        v_lshlrev_b32 v2, 3, v2            ; g*4*2 bytes
        s_mul_i32 s15, s13, 384
        s_mul_i32 s16, s12, 96
        s_add_u32 s15, s15, s16
        v_add_u32 v2, s15, v2
        s_waitcnt lgkmcnt(0)
        """)
        for j in range(3):
            A(f"global_load_dwordx2 v[{52+2*j}:{53+2*j}], v2, s[28:29] offset:{32*j}")
        A("s_waitcnt vmcnt(0)")
        for j in range(3):
            for q in range(2):
                A(f"v_lshlrev_b32 v{40+4*j+2*q}, 16, v{52+2*j+q}\nv_and_b32 v{41+4*j+2*q}, 0xffff0000, v{52+2*j+q}")
    A(f"""
    v_lshlrev_b32 v4, 4, v1
    s_mul_i32 s15, s12, 10240
    v_add_u32 v5, s15, v4
    s_lshl_b32 s15, s12, 10
    v_add_u32 v6, s15, v4
    v_lshlrev_b32 v7, 3, v1
    s_lshl_b32 s15, s12, 9
    s_add_u32 s15, s15, 4096
    v_add_u32 v7, s15, v7
    v_add_u32 v32, 40960, v4
    s_mul_i32 s30, s12, 10240
    s_mov_b32 s31, 0
    s_mov_b32 s32, 0
    """)
    def dma1(buf, i):
        if i % 4 == 0:
            A(f"s_add_u32 m0, s30, {buf + (i//4)*4096}")
            if i: A(f"v_add_u32 v5, 4096, v5")
            else: A("s_nop 0")
        A(f"global_load_lds_dwordx4 v5, s[22:23] offset:{(i%4)*1024} sc1")
        if i == 9: A(f"v_subrev_u32 v5, 8192, v5")
    def dma(buf):
        for i in range(10): dma1(buf, i)
    def compute(buf, dmabuf=None):
        NB = 4
        def rd(ks):
            for tt in range(2):
                r = 128 + ((ks % NB)*2 + tt)*4
                A(f"ds_read_b128 v[{r}:{r+3}], v{4 if buf == 0 else 32} offset:{tt*20480 + ks*1024}")
        for ks in range(NB-1): rd(ks)
        for ks in range(20):
            if ks + NB - 1 < 20:
                rd(ks + NB - 1)
                A(f"s_waitcnt lgkmcnt({2*(NB-1)})")
            else:
                A(f"s_waitcnt lgkmcnt({2*(19-ks)})")
            for tt in range(2):
                r = 128 + ((ks % NB)*2 + tt)*4
                for j in range(3):
                    acc = 64 + (tt*3 + j)*4
                    wv = (ks*3 + j)*4
                    c = "0" if ks == 0 else f"v[{acc}:{acc+3}]"
                    A(f"v_mfma_f32_16x16x32_bf16 v[{acc}:{acc+3}], a[{wv}:{wv+3}], v[{r}:{r+3}], {c}")
                if dmabuf is not None and tt == 0 and ks < 10:
                    dma1(dmabuf, ks)
    def epilogue():
        A("s_nop 7")
        for tt in range(2):
            for j in range(3):
                acc = 64 + (tt*3 + j)*4
                if m1:
                    for r in range(4):
                        x = acc + r
                        A(f"""
                        v_add_f32 v{x}, v{x}, v{40+4*j+r}
                        v_mul_f32 v2, v{x}, v{x}
                        v_mov_b32 v3, {f2h(GC1)}
                        v_fmac_f32 v3, {f2h(GC2)}, v2
                        v_mul_f32 v3, v3, v{x}
                        v_exp_f32 v3, v3
                        s_nop 0
                        v_add_f32 v3, 1.0, v3
                        v_rcp_f32 v3, v3
                        s_nop 0
                        v_mul_f32 v{x}, v{x}, v3
                        """)
                o = 96 + tt*8 + 2*j
                A(f"v_cvt_pk_bf16_f32 v{o}, v{acc}, v{acc+1}")
                A(f"v_cvt_pk_bf16_f32 v{o+1}, v{acc+2}, v{acc+3}")
            A(f"global_store_dwordx4 v6, v[{96+tt*8}:{99+tt*8}], s[24:25] offset:{0} sc1" if tt == 0 else
              f"global_store_dwordx4 v6, v[{96+tt*8}:{99+tt*8}], s[34:35] sc1")
            A(f"global_store_dwordx2 v7, v[{100+tt*8}:{101+tt*8}], s[24:25] sc1" if tt == 0 else
              f"global_store_dwordx2 v7, v[{100+tt*8}:{101+tt*8}], s[34:35] sc1")
    if not m1:
        A("s_mov_b32 s33, 1")
        A.wait_prog(F_H1, 64, 33, 32)
        dma(0)
        A.addbase(22, 40960)
        A("s_waitcnt vmcnt(0)")
        A.stamp(2)
        A("s_waitcnt vmcnt(0)")
        top = f".Lproj_{tag}"
        A.label(top)
        for par in range(2):
            A(f"s_waitcnt vmcnt(4)" if True else "")
            A("s_barrier")
            A(f"s_sub_u32 s33, s31, 1\ns_max_i32 s33, s33, 0")
            A.publish(26, 33)
            dm = opts.get('dm', 1)
            if dm == 0:
                dma(40960 * (1 - par))
                compute(40960 * par)
            elif dm == 1:
                compute(40960 * par, 40960 * (1 - par))
            else:
                compute(40960 * par)
            A.addbase(22, 40960)
            A.base(34, 6144, 24)
            epilogue()
            A(f"s_add_u32 s24, s24, s27\ns_addc_u32 s25, s25, 0\ns_add_u32 s31, s31, 1")
        A(f"""
        s_cmp_lt_u32 s31, 64
        s_cbranch_scc1 {top}
        s_waitcnt vmcnt(0)
        s_barrier
        """)
        A.publish(26, 31)
        A.stamp(3)
    else:
        A(f"""
        s_lshl_b32 s15, s38, 3
        v_and_b32 v33, 1, v1
        v_lshlrev_b32 v33, 2, v33
        v_add_u32 v33, s15, v33
        """)
        A.label(".Lm1_top")
        lp = A.newlabel("m1w")
        A("s_add_u32 s33, s31, 1")
        A.label(lp)
        A(f"""
        global_load_dword v3, v33, s[10:11] offset:{F_LN} sc1
        s_waitcnt vmcnt(0)
        v_cmp_gt_u32 vcc, s33, v3
        s_cbranch_vccz .Lm1_go
        s_sleep 2
        """)
        A.guard()
        A(f"s_branch {lp}")
        A.label(".Lm1_go")
        dma(0)
        A.addbase(22, 2*40960)
        A("s_waitcnt vmcnt(0)\ns_barrier")
        compute(0)
        A.base(34, 6144, 24)
        epilogue()
        A(f"s_add_u32 s24, s24, s27\ns_addc_u32 s25, s25, 0\ns_add_u32 s31, s31, 1")
        A("s_waitcnt vmcnt(0)\ns_barrier")
        A.publish(26, 31)
        A("s_cmp_lt_u32 s31, 32\ns_cbranch_scc1 .Lm1_top")
        A.stamp(3)
    A("s_branch .Lend")

ROLE_BITS = dict(h1=1, qkv=2, u=4, chain=8, b1=16, ln=32, m1=64, m2=128)

def gen_all(phases, fill_bytes=65*MB, opts=None):
    opts = opts or {}
    A = G()
    A.TS = opts.get('ts', 0)
    gen_k0(A, fill_bytes)
    labels = []
    for i, m in enumerate(phases):
        lab = f"mega{i}_kernel" if len(phases) > 1 else NAME + "_kernel"
        labels.append(lab)
        kernel_begin(A, lab)
        A(f"s_mov_b32 s3, {m}")
        A("s_branch .Lmega")
    A.raw(".p2align 8")
    A.label(".Lmega")
    A(f"""
    s_cmp_ge_u32 s2, 256
    s_cbranch_scc1 .Lend
    s_load_dwordx2 s[4:5], s[0:1], {KA['ws']}
    s_load_dwordx4 s[8:11], s[0:1], {KA['out']}
    v_lshrrev_b32 v2, 6, v0
    v_and_b32 v1, 63, v0
    s_mov_b32 s14, 0
    v_readfirstlane_b32 s12, v2
    s_lshr_b32 s13, s2, 3
    s_and_b32 s15, s2, 7
    s_waitcnt lgkmcnt(0)
    s_mov_b32 s6, s10
    s_mov_b32 s7, s11
    s_add_u32 s10, s4, {FLG0}
    s_addc_u32 s11, s5, 0
    """)
    A.stamp(0)
    A(f"""
    s_cmp_ge_u32 s15, 4
    s_cbranch_scc1 .Lrole_A
    s_lshl_b32 s15, s15, 4
    s_and_b32 s16, s13, 15
    s_lshr_b32 s17, s13, 4
    s_add_u32 s13, s15, s16            ; 0..63
    s_cmp_eq_u32 s17, 1
    s_cbranch_scc1 .Lrole_B
    s_bitcmp1_b32 s3, 3
    s_cbranch_scc0 .Lend
    s_bitcmp1_b32 s13, 0
    s_cbranch_scc1 .Lrole_V
    s_branch .Lrole_S
    """)
    A.label(".Lrole_B")
    import chain
    chain.detect(A)
    A(f"""
    s_bitcmp1_b32 s3, 0
    s_cbranch_scc0 .LB_after_h1
    """)
    gen_h1(A)
    A.label(".LB_after_h1")
    import stageb
    stageb.gen_stageB(A, opts)
    A("s_branch .Lend")
    A.label(".Lrole_A")
    A(f"""
    s_sub_u32 s16, s15, 4
    s_lshl_b32 s16, s16, 3
    s_lshr_b32 s15, s13, 3              ; type 0 Q, 1 K, 2 V, 3 U
    s_and_b32 s13, s13, 7
    s_add_u32 s13, s13, s16             ; head
    s_cmp_eq_u32 s15, 3
    s_cbranch_scc1 .Lrole_U
    s_bitcmp1_b32 s3, 1
    s_cbranch_scc0 .Lend
    s_lshl_b32 s16, s15, 3
    s_add_u32 s16, s16, {KA['Wq']}
    s_load_dwordx2 s[20:21], s[0:1], s16
    s_mul_i32 s16, s15, {24*MB}
    s_add_u32 s16, s16, {Q0}
    s_mul_i32 s17, s13, 12288
    s_add_u32 s16, s16, s17
    s_add_u32 s24, s4, s16
    s_addc_u32 s25, s5, 0
    s_mov_b32 s27, {32*12288}
    s_add_u32 s22, s4, {H1F0}
    s_addc_u32 s23, s5, 0
    s_lshl_b32 s26, s15, 7
    s_lshl_b32 s16, s13, 2
    s_add_u32 s26, s26, s16
    s_add_u32 s26, s26, {F_Q}
    s_mul_i32 s16, s13, 384
    s_waitcnt lgkmcnt(0)
    s_add_u32 s20, s20, s16
    s_addc_u32 s21, s21, 0
    """)
    gen_proj(A, "qkv", opts=opts)
    A.label(".Lrole_U")
    A("s_bitcmp1_b32 s3, 2\ns_cbranch_scc0 .Lend")
    gen_u(A, opts)
    import chain
    A.label(".Lrole_S")
    chain.gen_S(A, opts)
    A.label(".Lrole_V")
    chain.gen_V(A, opts)
    A.label(".Lend")
    A("s_endpgm")
    launches = [("prep_kernel", 256, 256, 16384)] + [(l, 256, 256, 163840) for l in labels]
    descs = [kdesc("prep_kernel", 64, 32, 64)] + [kdesc(l, 512, 102, 256) for l in labels]
    return assemble_file(launches, A.text(), descs)


def gen_u(A, opts):
    A.comment("==== U role: UT = V Wo_h, head s13")
    A(f"""
    s_load_dwordx2 s[20:21], s[0:1], {KA['Wo']}
    s_mul_i32 s16, s13, {192*1280}
    s_mul_i32 s17, s13, 12288
    s_add_u32 s17, s17, {V0}
    s_add_u32 s22, s4, s17
    s_addc_u32 s23, s5, 0
    s_mul_i32 s17, s13, 40960
    s_add_u32 s17, s17, {UT0}
    s_add_u32 s24, s4, s17
    s_addc_u32 s25, s5, 0
    s_lshl_b32 s26, s13, 2
    s_add_u32 s26, s26, {F_U}
    s_waitcnt lgkmcnt(0)
    s_add_u32 s20, s20, s16
    s_addc_u32 s21, s21, 0
    v_lshrrev_b32 v12, 5, v1             ; g>>1
    v_mul_u32_u24 v13, 10240, v12
    v_bfe_u32 v12, v1, 2, 3              ; r = 4(g&1)+(i>>2)
    v_lshlrev_b32 v14, 7, v12
    v_add_u32 v13, v13, v14
    v_and_b32 v14, 3, v1
    v_lshlrev_b32 v14, 3, v14
    v_add_u32 v13, v13, v14
    v_lshrrev_b32 v12, 1, v12            ; f
    """)
    for pr in range(4):
        A(f"v_xor_b32 v14, {pr}, v12\nv_lshlrev_b32 v14, 5, v14\nv_add_u32 v{8+pr}, v13, v14")
    for w in range(4):
        l = A.newlabel("uw")
        A(f"s_cmp_lg_u32 s12, {w}\ns_cbranch_scc1 {l}")
        for j in range(10):
            NT = 10*w + j
            A(f"v_add_u32 v{20+j}, {(NT>>2)*1024}, v{8+(NT&3)}")
        A.label(l)
    def frags(cc, buf):
        for j in range(10): A(f"v_add_u32 v{30+j}, {buf}, v{20+j}")
        for tl in range(2):
            T = 2*cc + tl
            c, half = [(c, h) for c in range(6) for h in range(2) if PAIRS[c][h] == T][0]
            for j in range(10):
                d = (c*10 + j)*4 + half*2
                A(f"ds_read_b64_tr_b16 a[{d}:{d+1}], v{30+j} offset:{tl*20480}")
    load_weights(A, 20, 1280, 192, 10, 'wo', frags, chunk_rows=32)
    A.stamp(1)
    A(f"""
    v_lshlrev_b32 v4, 4, v1
    v_lshlrev_b32 v6, 3, v1
    s_mul_i32 s30, s12, 3072
    v_add_u32 v5, s30, v4
    v_and_b32 v7, 15, v1
    v_lshlrev_b32 v7, 6, v7
    v_lshrrev_b32 v8, 4, v1
    v_lshlrev_b32 v8, 4, v8
    v_add_u32 v7, v7, v8
    s_mul_i32 s15, s12, 10240
    v_add_u32 v7, s15, v7
    v_add_u32 v8, 4096, v7
    v_add_u32 v9, 8192, v7
    s_mov_b32 s31, 0
    s_mov_b32 s32, 0
    s_lshl_b32 s36, s13, 2
    s_add_u32 s36, s10, s36
    s_addc_u32 s37, s11, 0              ; unused
    """)
    def waitV():
        lp = A.newlabel("wv"); done = A.newlabel("wvd")
        A(f"s_cmp_ge_u32 s32, s33\ns_cbranch_scc1 {done}\nv_mov_b32 v2, 0")
        A.label(lp)
        A(f"""
        global_load_dword v3, v2, s[36:37] offset:{F_V} sc1
        s_waitcnt vmcnt(0)
        v_readfirstlane_b32 s32, v3
        s_nop 3
        s_cmp_ge_u32 s32, s33
        s_cbranch_scc1 {done}
        s_sleep 2
        """)
        A.guard()
        A(f"s_branch {lp}")
        A.label(done)
    def dma(buf):
        A(f"s_add_u32 m0, s30, {buf}\ns_nop 0")
        for i in range(3):
            A(f"global_load_lds_dwordx4 v5, s[22:23] offset:{i*1024} sc1")
        A.addbase(22, 32*12288)
    A("s_mov_b32 s33, 1")
    waitV()
    dma(0)
    A("s_waitcnt vmcnt(0)")
    A.stamp(2)
    A("s_waitcnt vmcnt(0)")
    A.label(".Lu_top")
    for par in range(2):
        buf = par*12288
        A("s_waitcnt vmcnt(10)\ns_barrier")
        A(f"s_sub_u32 s33, s31, 1\ns_max_i32 s33, s33, 0")
        A.publish(26, 33)
        for tt in range(2):
            for c in range(4):
                r = 64 + (tt*6 + c)*4
                A(f"ds_read_b128 v[{r}:{r+3}], v4 offset:{buf + tt*6144 + c*1024}")
            for k in range(2):
                r = 64 + (tt*6 + 4 + k)*4
                o = (buf + tt*6144 + 4096)//512 + 2*k
                A(f"ds_read2st64_b64 v[{r}:{r+3}], v6 offset0:{o} offset1:{o+1}")
        sk = A.newlabel("und")
        A(f"s_cmp_ge_u32 s31, 63\ns_cbranch_scc1 {sk}\ns_add_u32 s33, s31, 2")
        waitV()
        dma(12288*(1-par))
        A.label(sk)
        A("s_waitcnt lgkmcnt(0)")
        def epi(j):
            acc = 112 + (j % 4)*8
            o = 144 + (j % 4)*4
            for q in range(4):
                A(f"v_cvt_pk_bf16_f32 v{o+q}, v{acc+2*q}, v{acc+2*q+1}")
            A(f"global_store_dwordx4 v{7 + j//4}, v[{o}:{o+3}], s[24:25] offset:{(j%4)*1024} sc1")
        for j in range(10):
            acc = 112 + (j % 4)*8
            n = 0
            for c in range(6):
                for tt in range(2):
                    r = 64 + (tt*6 + c)*4
                    wv = (c*10 + j)*4
                    a = acc + tt*4
                    cs = "0" if c == 0 else f"v[{a}:{a+3}]"
                    A(f"v_mfma_f32_16x16x32_bf16 v[{a}:{a+3}], v[{r}:{r+3}], a[{wv}:{wv+3}], {cs}")
                    n += 1
                    if n == 8 and j > 0: epi(j-1)
        A("s_nop 7")
        epi(9)
        A(f"s_add_u32 s24, s24, {32*40960}\ns_addc_u32 s25, s25, 0\ns_add_u32 s31, s31, 1")
    A(f"""
    s_cmp_lt_u32 s31, 64
    s_cbranch_scc1 .Lu_top
    s_waitcnt vmcnt(0)
    s_barrier
    """)
    A.publish(26, 31)
    A.stamp(3)
    A("s_branch .Lend")

def main():
    out = sys.argv[1]
    phases = [int(x) for x in sys.argv[2].split(",")]
    opts = {}
    for a in sys.argv[3:]:
        k, v = a.split("="); opts[k] = int(v)
    open(out, "w").write(gen_all(phases, opts=opts))
```

```python
from asmlib import *
from layout import *
import mega, chain
from mega import f2h, mod_to_lds
from chain import l2p, det_wait

RSTR = 336
PART = 32*RSTR

def reduce_setup(A):
    A(f"""
    v_lshrrev_b32 v2, 4, v1
    v_mul_u32_u24 v2, {4*RSTR}, v2
    v_and_b32 v3, 15, v1
    v_lshlrev_b32 v3, 2, v3
    v_add_u32 v2, v2, v3
    s_mul_i32 s15, s12, {PART}
    v_add_u32 v20, s15, v2
    """)
    for k in range(3):
        A(f"""
        v_add_u32 v2, {256*k}, v0
        v_min_u32 v2, 639, v2
        v_mul_u32_u24 v3, 3277, v2
        v_lshrrev_b32 v3, 16, v3
        v_mul_u32_u24 v4, 20, v3
        v_sub_u32 v4, v2, v4                ; q
        v_mul_u32_u24 v5, {RSTR}, v3
        v_lshlrev_b32 v6, 4, v4
        v_add_u32 v{21+k}, v5, v6
        v_mul_u32_u24 v5, 640, v3
        v_lshlrev_b32 v6, 2, v4
        v_add_u32 v5, v5, v6
        v_add_u32 v{24+k}, s20, v5
        v_lshlrev_b32 v{27+k}, 4, v4
        """)

def write_partials(A, ACC):
    for mt in range(2):
        for nt in range(5):
            for r in range(4):
                A(f"ds_write_b32 v20, v{ACC + (mt*5+nt)*4 + r} offset:{(mt*16 + r)*RSTR + nt*64}")

def read_sum(A, k, d):
    for w in range(4):
        A(f"ds_read_b128 v[{d+4*w}:{d+4*w+3}], v{21+k} offset:{w*PART}")
    A("s_waitcnt lgkmcnt(0)")
    for i in range(4):
        A(f"v_add_f32 v{d+i}, v{d+i}, v{d+4+i}\nv_add_f32 v{d+8+i}, v{d+8+i}, v{d+12+i}\nv_add_f32 v{d+i}, v{d+i}, v{d+8+i}")

def gen_b1(A, opts):
    A.comment("==== B1: token combine. group s18, slice -> c0 = s20")
    VEC = 4*PART
    A(f"""
    s_load_dwordx2 s[18:19], s[0:1], {KA['x']}
    s_lshr_b32 s38, s13, 3
    s_and_b32 s20, s13, 7
    s_mul_i32 s20, s20, 80
    s_lshl_b32 s47, s13, 2
    s_add_u32 s47, s47, {F_B1}
    """)
    mod_to_lds(A, 2*640, 640, VEC)
    reduce_setup(A)
    A("s_lshl_b32 s15, s20, 2")
    for k in range(3):
        A(f"v_add_u32 v2, s15, v{27+k}\nds_read_b128 v[{32+4*k}:{35+4*k}], v2 offset:{VEC}")
    A(f"""
    v_and_b32 v2, 15, v1
    v_lshrrev_b32 v3, 4, v1
    v_lshlrev_b32 v8, 6, v2
    v_lshlrev_b32 v4, 4, v3
    v_add_u32 v8, v8, v4
    s_lshl_b32 s15, s20, 6
    s_mul_i32 s16, s12, {8*40960}
    s_add_u32 s15, s15, s16
    s_add_u32 s15, s15, 2048
    v_add_u32 v8, s15, v8
    s_mul_i32 s16, s12, {8*2560}
    v_lshlrev_b32 v9, 4, v1
    v_add_u32 v9, s16, v9
    v_mul_u32_u24 v10, 2560, v3
    v_lshlrev_b32 v4, 4, v2
    v_add_u32 v10, v10, v4
    v_add_u32 v10, s16, v10
    v_add_u32 v10, 2048, v10
    v_add_u32 v11, {4*2560}, v10
    """)
    for nt in range(5):
        A(f"""
        v_and_b32 v3, 15, v1
        v_add_u32 v3, s20, v3
        v_add_u32 v3, {16*nt}, v3          ; col
        v_mul_u32_u24 v4, 1639, v3
        v_lshrrev_b32 v4, 16, v4
        v_mul_u32_u24 v5, 40, v4
        v_sub_u32 v6, v3, v5
        v_and_b32 v7, 0xf8, v6
        v_cmp_eq_u32 vcc, 16, v7
        v_mov_b32 v4, 8
        s_nop 0
        v_cndmask_b32 v7, v7, v4, vcc
        v_cmp_eq_u32 vcc, 8, v7
        v_mov_b32 v6, 16
        s_nop 0
        v_cndmask_b32 v4, v4, v6, vcc     ; width
        v_add_u32 v5, v5, v7              ; col0
        v_sub_u32 v6, v3, v5
        v_lshlrev_b32 v6, 4, v6
        v_lshlrev_b32 v5, 9, v5
        v_add_u32 v6, v6, v5
        v_add_u32 v6, 32768, v6
        v_lshlrev_b32 v4, 4, v4           ; width*16
        v_lshrrev_b32 v5, 4, v1
        s_lshl_b32 s15, s12, 3
        v_add_u32 v5, s15, v5
        v_mul_lo_u32 v5, v5, v4
        v_add_u32 v{44+nt}, v6, v5
        v_lshlrev_b32 v4, 2, v4
        v_add_u32 v{49+nt}, v{44+nt}, v4
        """)
        l2p(A, 44+nt, 2); l2p(A, 49+nt, 2)
    det_wait(A)
    A(f"""
    s_mov_b32 s46, 0
    s_mov_b32 s48, 0
    s_mov_b32 s49, 0
    s_mov_b32 s50, 0
    s_waitcnt lgkmcnt(0)
    """)
    def loadU():
        A(f"""
        s_add_u32 s33, s38, 1
        """)
        A.wait_prog(F_U, 32, 33, 46)
        A(f"""
        s_mul_i32 s15, s38, {32*40960}
        s_add_u32 s15, s15, {UT0}
        s_add_u32 s40, s4, s15
        s_addc_u32 s41, s5, 0
        """)
        for hh in range(8):
            for nt in range(5):
                d = (hh*5 + nt)*4
                A(f"global_load_dwordx4 a[{d}:{d+3}], v8, s[40:41] offset:{nt*1024 - 2048} sc1")
            if hh < 7: A.addbase(40, 40960)
    loadU()
    A.label(".LB1_top")
    PT = 64; PM = 128; ACC = 144; XR = 184
    A("s_add_u32 s33, s38, 1")
    A.wait_prog(F_S, 32, 33, 48)
    A.wait_prog(F_Y, 32, 33, 49)
    A(f"""
    s_mul_i32 s15, s38, {32*2560}
    s_add_u32 s15, s15, {PT0}
    s_add_u32 s40, s4, s15
    s_addc_u32 s41, s5, 0
    s_lshl_b32 s15, s38, 20
    s_lshr_b32 s16, s38, 1
    s_and_b32 s16, s16, 1
    s_lshl_b32 s16, s16, 13
    s_xor_b32 s42, s34, s16
    s_add_u32 s42, s42, s15
    s_addc_u32 s43, s35, 0
    """)
    for ks in range(2):
        for mt in range(2):
            d = PM + (ks*2 + mt)*4
            A(f"global_load_dwordx4 v[{d}:{d+3}], v{10+ks}, s[40:41] offset:{mt*256} sc1")
    for hh in range(8):
        for mt in range(2):
            d = PT + (hh*2 + mt)*4
            A(f"global_load_dwordx4 v[{d}:{d+3}], v9, s[40:41] offset:{mt*1024} sc1")
        if hh < 7: A.addbase(40, 2560)
    for ks in range(2):
        for nt in range(5):
            d = 160 + (ks*5 + nt)*4
            A(f"global_load_dwordx4 a[{d}:{d+3}], v{44+ks*5+nt}, s[42:43] sc1")
    A(f"s_mul_i32 s15, s38, {32*640}")
    for k in range(3):
        A(f"v_add_u32 v2, s15, v{24+k}\nv_lshlrev_b32 v2, 1, v2\nglobal_load_dwordx2 v[{XR+2*k}:{XR+2*k+1}], v2, s[18:19]")
    for hh in range(8):
        A(f"s_waitcnt vmcnt({13 + 2*(7-hh)})")
        for mt in range(2):
            for nt in range(5):
                a = ACC + (mt*5 + nt)*4
                p = PT + (hh*2 + mt)*4
                u = (hh*5 + nt)*4
                cs = "0" if hh == 0 else f"v[{a}:{a+3}]"
                A(f"v_mfma_f32_16x16x32_bf16 v[{a}:{a+3}], v[{p}:{p+3}], a[{u}:{u+3}], {cs}")
    A("s_waitcnt vmcnt(3)")
    for ks in range(2):
        for mt in range(2):
            for nt in range(5):
                a = ACC + (mt*5 + nt)*4
                p = PM + (ks*2 + mt)*4
                u = 160 + (ks*5 + nt)*4
                A(f"v_mfma_f32_16x16x32_bf16 v[{a}:{a+3}], v[{p}:{p+3}], a[{u}:{u+3}], v[{a}:{a+3}]")
    A("s_nop 7")
    write_partials(A, ACC)
    A("s_waitcnt lgkmcnt(0) vmcnt(0)\ns_barrier")
    A(f"s_mul_i32 s15, s38, {32*640*4}\ns_add_u32 s15, s15, {X20}")
    for k in range(3):
        d = 64 + 16*k
        read_sum(A, k, d)
        x = XR + 2*k
        A(f"""
        v_lshlrev_b32 v{d+4}, 16, v{x}
        v_and_b32 v{d+5}, 0xffff0000, v{x}
        v_lshlrev_b32 v{d+6}, 16, v{x+1}
        v_and_b32 v{d+7}, 0xffff0000, v{x+1}
        """)
        for i in range(4): A(f"v_fma_f32 v{d+i}, v{d+i}, v{32+4*k+i}, v{d+4+i}")
        A(f"v_lshlrev_b32 v2, 2, v{24+k}\nv_add_u32 v2, s15, v2")
        A(f"global_store_dwordx4 v2, v[{d}:{d+3}], s[4:5] sc1")
    A(f"""
    s_waitcnt vmcnt(0)
    s_barrier
    s_add_u32 s50, s50, 1
    """)
    A.publish(47, 50)
    A(f"""
    s_add_u32 s38, s38, 3
    s_cmp_ge_u32 s38, 64
    s_cbranch_scc1 .LB1_fin
    """)
    loadU()
    A("s_branch .LB1_top")
    A.label(".LB1_fin")
    A.stamp(3)
    A("s_branch .Lend")

def gen_ln2(A, opts):
    A.comment("==== LN2: y = LN(LN(x2)*(1+cb)+sb)")
    A(f"""
    s_sub_u32 s13, s13, 24
    s_lshr_b32 s38, s13, 1
    s_and_b32 s20, s13, 1             ; half
    s_lshl_b32 s47, s13, 2
    s_add_u32 s47, s47, {F_LN}
    """)
    mod_to_lds(A, 3*640, 1280, 0)
    A("v_and_b32 v2, 15, v1\nv_lshlrev_b32 v3, 5, v2")
    for j in range(5):
        A(f"ds_read_b128 v[{64+8*j}:{67+8*j}], v3 offset:{512*j}")
        A(f"ds_read_b128 v[{68+8*j}:{71+8*j}], v3 offset:{512*j+16}")
        A(f"ds_read_b128 v[{104+8*j}:{107+8*j}], v3 offset:{2560+512*j}")
        A(f"ds_read_b128 v[{108+8*j}:{111+8*j}], v3 offset:{2560+512*j+16}")
    A(f"""
    v_lshrrev_b32 v4, 4, v1
    s_lshl_b32 s15, s12, 2
    v_add_u32 v4, s15, v4
    s_lshl_b32 s15, s20, 4
    v_add_u32 v5, s15, v4
    v_mul_u32_u24 v5, 2560, v5
    v_add_u32 v5, v5, v3
    v_lshrrev_b32 v6, 2, v2
    v_lshlrev_b32 v6, 10, v6
    v_and_b32 v7, 3, v2
    v_lshlrev_b32 v7, 8, v7
    v_add_u32 v6, v6, v7
    v_lshlrev_b32 v7, 4, v4
    v_add_u32 v6, v6, v7
    s_mul_i32 s15, s20, 20480
    v_add_u32 v6, s15, v6
    s_mov_b32 s50, 0
    s_waitcnt lgkmcnt(0)
    """)
    for i in range(40): A(f"v_add_f32 v{104+i}, 1.0, v{104+i}")
    A.label(".LLN_top")
    lp = A.newlabel("lnw")
    A(f"""
    s_mul_i32 s15, s38, 171
    s_lshr_b32 s15, s15, 9            ; s/3
    s_mul_i32 s16, s15, 3
    s_sub_u32 s16, s38, s16           ; s%3
    s_add_u32 s33, s15, 1
    s_lshl_b32 s16, s16, 5
    v_and_b32 v2, 7, v1
    v_lshlrev_b32 v2, 2, v2
    v_add_u32 v2, s16, v2
    """)
    A.label(lp)
    A(f"""
    global_load_dword v3, v2, s[10:11] offset:{F_B1} sc1
    s_waitcnt vmcnt(0)
    v_cmp_gt_u32 vcc, s33, v3
    s_cbranch_vccz .LLN_go
    s_sleep 2
    """)
    A.guard()
    A(f"s_branch {lp}")
    A.label(".LLN_go")
    A(f"""
    s_mul_i32 s15, s38, {32*2560}
    s_add_u32 s15, s15, {X20}
    s_add_u32 s40, s4, s15
    s_addc_u32 s41, s5, 0
    s_mul_i32 s15, s38, 40960
    s_add_u32 s15, s15, {YF0}
    s_add_u32 s42, s4, s15
    s_addc_u32 s43, s5, 0
    """)
    for j in range(5):
        A(f"global_load_dwordx4 v[{16+8*j}:{19+8*j}], v5, s[40:41] offset:{512*j} sc1")
        A(f"global_load_dwordx4 v[{20+8*j}:{23+8*j}], v5, s[40:41] offset:{512*j+16} sc1")
    A("s_waitcnt vmcnt(0)")
    for ph in range(2):
        A("v_add_f32 v8, v16, v17")
        for i in range(2, 40): A(f"v_add_f32 v8, v8, v{16+i}")
        A.red16(8)
        A(f"v_mul_f32 v8, {f2h(1/640)}, v8")
        for i in range(40): A(f"v_sub_f32 v{16+i}, v{16+i}, v8")
        A("v_mul_f32 v9, v16, v16")
        for i in range(1, 40): A(f"v_fmac_f32 v9, v{16+i}, v{16+i}")
        A.red16(9)
        A(f"v_mov_b32 v10, {f2h(1e-5)}\nv_fmac_f32 v10, {f2h(1/640)}, v9\nv_rsq_f32 v10, v10\ns_nop 0")
        for i in range(40):
            A(f"v_mul_f32 v{16+i}, v{16+i}, v10")
            if ph == 0: A(f"v_fma_f32 v{16+i}, v{16+i}, v{104+i}, v{64+i}")
    for i in range(20): A(f"v_cvt_pk_bf16_f32 v{144+i}, v{16+2*i}, v{17+2*i}")
    for j in range(5):
        A(f"global_store_dwordx4 v6, v[{144+4*j}:{147+4*j}], s[42:43] sc1")
        if j < 4: A.addbase(42, 4096)
    A("s_waitcnt vmcnt(0)\ns_barrier\ns_add_u32 s50, s50, 1")
    A.publish(47, 50)
    A(f"""
    s_add_u32 s38, s38, 2
    s_cmp_lt_u32 s38, 64
    s_cbranch_scc1 .LLN_top
    """)
    A.stamp(3)
    A("s_branch .Lend")

def gen_m2(A, opts):
    A.comment("==== M2: out = x2 + gb*(hh w2 + b2)")
    VEC = 131072
    A(f"""
    s_sub_u32 s13, s13, 44
    s_load_dwordx4 s[16:19], s[0:1], {KA['w2']}    ; w2, b2
    s_lshr_b32 s38, s13, 3
    s_lshr_b32 s21, s13, 3            ; group
    s_and_b32 s20, s13, 7
    s_mul_i32 s20, s20, 80
    s_waitcnt lgkmcnt(0)
    s_mov_b32 s44, s18
    s_mov_b32 s45, s19
    s_mul_i32 s15, s12, {384*1280}
    s_lshl_b32 s22, s20, 1
    s_add_u32 s15, s15, s22
    s_add_u32 s24, s16, s15
    s_addc_u32 s25, s17, 0
    """)
    mod_to_lds(A, 5*640, 640, VEC)
    A(f"""
    v_lshrrev_b32 v2, 3, v1
    v_mul_u32_u24 v3, 1280, v2
    v_lshrrev_b32 v4, 1, v2
    v_and_b32 v4, 3, v4
    v_lshlrev_b32 v4, 1, v4
    v_and_b32 v5, 7, v1
    v_xor_b32 v4, v4, v5
    v_lshlrev_b32 v4, 4, v4
    v_add_u32 v4, v4, v3
    s_lshl_b32 s30, s12, 15
    v_lshrrev_b32 v12, 5, v1
    v_lshlrev_b32 v13, 11, v12         ; (g>>1)*2048
    v_bfe_u32 v12, v1, 2, 3
    v_lshlrev_b32 v14, 7, v12
    v_add_u32 v13, v13, v14
    v_and_b32 v14, 3, v1
    v_lshlrev_b32 v14, 3, v14
    v_add_u32 v13, v13, v14
    v_add_u32 v13, s30, v13
    v_lshrrev_b32 v12, 1, v12
    """)
    for pr in range(4):
        A(f"v_xor_b32 v14, {pr}, v12\nv_lshlrev_b32 v14, 5, v14\nv_add_u32 v{8+pr}, v13, v14")
    def issue(pc):
        buf = (pc % 4)*8192
        for rb in range(4):
            for p in range(2):
                A(f"s_add_u32 m0, s30, {buf + (rb*2+p)*1024 - p*32}\ns_nop 0")
                A(f"global_load_lds_dwordx4 v4, s[24:25] offset:{p*32}")
            A.addbase(24, 8*1280)
    for pc in range(3): issue(pc)
    for pc in range(12):
        infl = min(12, pc+3) - (pc+1)
        A(f"s_waitcnt vmcnt({infl*8})")
        if pc + 3 < 12: issue(pc+3)
        fgl = pc // 6
        for tl in range(2):
            T = 2*(pc % 6) + tl
            c, half = [(c, h) for c in range(6) for h in range(2) if PAIRS[c][h] == T][0]
            for nt in range(5):
                d = ((fgl*6 + c)*5 + nt)*4 + half*2
                pn, pr = (0, nt) if nt < 4 else (1, 3)
                A(f"ds_read_b64_tr_b16 a[{d}:{d+1}], v{8+pr} offset:{(pc%4)*8192 + tl*4096 + pn*1024}")
        A("s_waitcnt lgkmcnt(0)")
    A("s_barrier")
    reduce_setup(A)
    A("s_lshl_b32 s15, s20, 2\ns_lshl_b32 s22, s20, 1")
    for k in range(3):
        A(f"v_add_u32 v2, s15, v{27+k}\nv_add_u32 v2, {VEC}, v2\nds_read_b128 v[{32+4*k}:{35+4*k}], v2")
        A(f"v_lshrrev_b32 v2, 1, v{27+k}\nv_add_u32 v2, s22, v2\nglobal_load_dwordx2 v[{56+2*k}:{57+2*k}], v2, s[44:45]")
    A("s_waitcnt vmcnt(0) lgkmcnt(0)")
    for k in range(3):
        for q in range(2):
            A(f"v_lshlrev_b32 v{44+4*k+2*q}, 16, v{56+2*k+q}\nv_and_b32 v{45+4*k+2*q}, 0xffff0000, v{56+2*k+q}")
    A(f"""
    s_mul_i32 s15, s12, {2*12288}
    v_lshlrev_b32 v8, 4, v1
    v_add_u32 v8, s15, v8
    v_lshlrev_b32 v9, 3, v1
    v_add_u32 v9, s15, v9
    v_add_u32 v9, 4096, v9
    s_lshl_b32 s16, s21, 5
    v_and_b32 v10, 7, v1
    v_lshlrev_b32 v10, 2, v10
    v_add_u32 v10, s16, v10
    """)
    A.stamp(1)
    A.label(".LM2_top")
    lp = A.newlabel("m2w")
    A("s_lshr_b32 s33, s38, 1\ns_add_u32 s33, s33, 1")
    A.label(lp)
    A(f"""
    global_load_dword v3, v10, s[10:11] offset:{F_M1} sc1
    s_waitcnt vmcnt(0)
    v_cmp_gt_u32 vcc, s33, v3
    s_cbranch_vccz .LM2_go
    s_sleep 2
    """)
    A.guard()
    A(f"s_branch {lp}")
    A.label(".LM2_go")
    HF = 64; ACC = 160; XR = 200
    A(f"""
    s_mul_i32 s15, s38, {8*12288}
    s_add_u32 s15, s15, {HH0}
    s_add_u32 s40, s4, s15
    s_addc_u32 s41, s5, 0
    """)
    for fgl in range(2):
        for mt in range(2):
            for c in range(4):
                d = HF + ((fgl*6 + c)*2 + mt)*4
                A(f"global_load_dwordx4 v[{d}:{d+3}], v8, s[40:41] offset:{c*1024} sc1")
            for k in range(2):
                d = HF + ((fgl*6 + 4 + k)*2 + mt)*4
                A(f"global_load_dwordx2 v[{d}:{d+1}], v9, s[40:41] offset:{k*1024} sc1")
                A(f"global_load_dwordx2 v[{d+2}:{d+3}], v9, s[40:41] offset:{k*1024+512} sc1")
            A.addbase(40, 6144)
    A(f"s_mul_i32 s15, s38, {32*640*4}\ns_add_u32 s15, s15, {X20}")
    for k in range(3):
        A(f"v_lshlrev_b32 v2, 2, v{24+k}\nv_add_u32 v2, s15, v2\nglobal_load_dwordx4 v[{XR+4*k}:{XR+4*k+3}], v2, s[4:5] sc1")
    for fgl in range(2):
        A(f"s_waitcnt vmcnt({3 + 16*(1-fgl)})")
        for c in range(6):
            for mt in range(2):
                for nt in range(5):
                    a = ACC + (mt*5 + nt)*4
                    p = HF + ((fgl*6 + c)*2 + mt)*4
                    u = ((fgl*6 + c)*5 + nt)*4
                    cs = "0" if (fgl == 0 and c == 0) else f"v[{a}:{a+3}]"
                    A(f"v_mfma_f32_16x16x32_bf16 v[{a}:{a+3}], v[{p}:{p+3}], a[{u}:{u+3}], {cs}")
    A("s_nop 7\ns_barrier")
    write_partials(A, ACC)
    A("s_waitcnt lgkmcnt(0) vmcnt(0)\ns_barrier")
    A(f"s_mul_i32 s15, s38, {32*640*2}")
    for k in range(3):
        d = 64 + 16*k
        read_sum(A, k, d)
        for i in range(4):
            A(f"v_add_f32 v{d+i}, v{d+i}, v{44+4*k+i}\nv_fma_f32 v{d+i}, v{d+i}, v{32+4*k+i}, v{XR+4*k+i}")
        A(f"""
        v_cvt_pk_bf16_f32 v{d}, v{d}, v{d+1}
        v_cvt_pk_bf16_f32 v{d+1}, v{d+2}, v{d+3}
        v_lshlrev_b32 v2, 1, v{24+k}
        v_add_u32 v2, s15, v2
        global_store_dwordx2 v2, v[{d}:{d+1}], s[8:9]
        """)
    A(f"""
    s_add_u32 s38, s38, 2
    s_cmp_lt_u32 s38, 64
    s_cbranch_scc1 .LM2_top
    """)
    A.stamp(3)
    A("s_branch .Lend")

def gen_stageB(A, opts):
    A(f"""
    s_barrier
    s_cmp_lt_u32 s13, 24
    s_cbranch_scc1 .Lr_b1
    s_cmp_lt_u32 s13, 28
    s_cbranch_scc1 .Lr_ln
    s_cmp_lt_u32 s13, 44
    s_cbranch_scc1 .Lr_m1
    s_cmp_lt_u32 s13, 60
    s_cbranch_scc0 .Lend
    s_bitcmp1_b32 s3, 7
    s_cbranch_scc0 .Lend
    """)
    gen_m2(A, opts)
    A.label(".Lr_b1")
    A("s_bitcmp1_b32 s3, 4\ns_cbranch_scc0 .Lend")
    gen_b1(A, opts)
    A.label(".Lr_ln")
    A("s_bitcmp1_b32 s3, 5\ns_cbranch_scc0 .Lend")
    gen_ln2(A, opts)
    A.label(".Lr_m1")
    A(f"""
    s_bitcmp1_b32 s3, 6
    s_cbranch_scc0 .Lend
    s_sub_u32 s13, s13, 28
    s_lshl_b32 s26, s13, 2
    s_add_u32 s26, s26, {F_M1}
    s_lshr_b32 s38, s13, 3
    s_and_b32 s13, s13, 7              ; fg
    s_load_dwordx2 s[20:21], s[0:1], {KA['w1']}
    s_mul_i32 s16, s38, 40960
    s_add_u32 s16, s16, {YF0}
    s_add_u32 s22, s4, s16
    s_addc_u32 s23, s5, 0
    s_lshl_b32 s16, s38, 3
    s_add_u32 s16, s16, s13
    s_mul_i32 s16, s16, 12288
    s_add_u32 s16, s16, {HH0}
    s_add_u32 s24, s4, s16
    s_addc_u32 s25, s5, 0
    s_mov_b32 s27, {2*8*12288}
    s_mul_i32 s16, s13, 384
    s_waitcnt lgkmcnt(0)
    s_add_u32 s20, s20, s16
    s_addc_u32 s21, s21, 0
    """)
    mega.gen_proj(A, "m1", m1=True, opts=opts)
```

```python
from asmlib import *
from layout import *
import mega
from mega import f2h, load_weights
from sched import Sched, Atom

WL = 0
MEMB = 98304
KB = 108544
QB = 133120
QF = 145408
KM = 148480
FL = 151552
UB = 108544
VF = 157696
RB = 160768
NLDS = 12
NR = 48
W0 = 128
SC = 32

def wreg(i):
    if i < 32: return f"a[{8*i}:{8*i+7}]", ('a', 8*i)
    b = W0 + 8*(i-32)
    return f"v[{b}:{b+7}]", ('v', b)

def l2p(A, v, tmp):
    A(f"v_lshrrev_b32 v{tmp}, 13, v{v}\nv_lshlrev_b32 v{tmp}, 13, v{tmp}\nv_add_u32 v{v}, v{v}, v{tmp}")

def maxtree(A, regs, t0):
    regs = list(regs)
    A(f"v_max3_u32 v{t0}, v{regs[0]}, v{regs[1]}, v{regs[2]}")
    A(f"v_max3_u32 v{t0+1}, v{regs[3]}, v{regs[4]}, v{regs[5]}")
    i = 6; k = 0
    while i < len(regs):
        A(f"v_max3_u32 v{t0+k}, v{t0+k}, v{regs[i]}, v{regs[i+1]}")
        i += 2; k ^= 1
    A(f"v_max_u32 v{t0}, v{t0}, v{t0+1}")
    A(f"v_cmp_eq_u32 vcc, -1, v{t0}")

def tr_addr_sparse(A, vd, npanel):
    t = vd + 4
    A(f"""
    v_lshrrev_b32 v{t}, 5, v1                ; gB>>1
    v_lshlrev_b32 v{t}, 1, v{t}
    v_bfe_u32 v{t+1}, v1, 3, 1               ; i>>3
    v_add_u32 v{t}, v{t}, v{t+1}             ; rb
    v_mul_u32_u24 v{t}, {npanel*1024}, v{t}
    v_bfe_u32 v{t+2}, v1, 4, 1               ; gB&1
    v_lshlrev_b32 v{t+3}, 9, v{t+2}          ; 4 rows*128
    v_add_u32 v{t}, v{t}, v{t+3}
    v_bfe_u32 v{t+3}, v1, 2, 1
    v_lshlrev_b32 v{t+3}, 7, v{t+3}
    v_add_u32 v{t}, v{t}, v{t+3}
    v_and_b32 v{t+3}, 3, v1
    v_lshlrev_b32 v{t+3}, 3, v{t+3}
    v_add_u32 v{t}, v{t}, v{t+3}
    v_lshlrev_b32 v{t+1}, 1, v{t+1}
    v_or_b32 v{t+1}, v{t+1}, v{t+2}          ; f
    """)
    for pr in range(4):
        A(f"v_xor_b32 v{t+2}, {pr}, v{t+1}\nv_lshlrev_b32 v{t+2}, 5, v{t+2}\nv_add_u32 v{vd+pr}, v{t}, v{t+2}")

def load_sparse_weights(A, wbase, RS, nrows, npanel, tiles_of_wave, ntile, fragidx, dest, chunk_rows, nbuf, hold=-1):
    tr_addr_sparse(A, 8, npanel)
    AB = 12
    assert AB + 2*ntile <= 32
    for w in range(4):
        l = A.newlabel("sw")
        A(f"s_cmp_lg_u32 s12, {w}\ns_cbranch_scc1 {l}")
        tmp = []
        for j in range(ntile):
            T = tiles_of_wave(w, j)
            tmp.append((T >> 2, T & 3))
        for j, (pn, pr) in enumerate(tmp):
            A(f"v_add_u32 v{AB+2*j}, {pn*1024}, v{8+pr}")
            A(f"v_add_u32 v{AB+2*j+1}, {pn*1024 + 256}, v{8+(pr^1)}")
        A.label(l)
    state = {'buf': 0}
    half_bytes = 4*npanel*1024
    def frags(c, buf):
        delta = buf - state['buf']
        state['buf'] = buf
        if delta:
            for j in range(2*ntile):
                A(f"v_add_u32 v{AB+j}, {delta & 0xffffffff}, v{AB+j}")
        for tl in range(chunk_rows // 64):
            t = c*(chunk_rows//64) + tl
            for j in range(ntile):
                kind, b = dest(fragidx(t, j))
                for hf in range(2):
                    off = (tl*2 + hf)*half_bytes
                    assert off < 65536
                    A(f"ds_read_b64_tr_b16 {kind}[{b+4*hf}:{b+4*hf+1}], v{AB+2*j} offset:{off}")
                    A(f"ds_read_b64_tr_b16 {kind}[{b+4*hf+2}:{b+4*hf+3}], v{AB+2*j+1} offset:{off}")
    load_weights(A, wbase, RS, nrows, npanel, 'dense', frags, chunk_rows=chunk_rows, nbuf=nbuf, hold=hold)

def frag_dest(fid):
    if fid < NR: return wreg(fid)[1]
    return ('v', SC + 8*(fid-NR))

def spill_lds_frags(A):
    A(f"""
    v_lshlrev_b32 v2, 4, v1
    s_mul_i32 s15, s12, {NLDS*2048}
    v_add_u32 v2, s15, v2
    """)
    for i in range(NLDS):
        b = SC + 8*i
        A(f"ds_write_b128 v2, v[{b}:{b+3}] offset:{WL + i*2048}")
        A(f"ds_write_b128 v2, v[{b+4}:{b+7}] offset:{WL + i*2048 + 1024}")
    A("s_waitcnt lgkmcnt(0)")

def common_setup(A):
    A(f"""
    s_mul_i32 s22, s12, 16384
    s_add_u32 s22, s22, 5120
    v_lshlrev_b32 v4, 4, v1
    v_add_u32 v4, s22, v4
    v_lshlrev_b32 v5, 3, v1
    v_add_u32 v5, s22, v5
    v_add_u32 v5, 2048, v5
    s_mul_i32 s23, s12, 2560
    s_add_u32 s23, s23, {MEMB}
    v_lshlrev_b32 v6, 4, v1
    v_add_u32 v6, s23, v6
    v_lshlrev_b32 v7, 3, v1
    v_add_u32 v7, s23, v7
    v_add_u32 v7, 2048, v7
    v_lshrrev_b32 v2, 4, v1
    v_lshlrev_b32 v2, 8, v2
    v_and_b32 v3, 1, v1
    v_lshlrev_b32 v3, 7, v3
    v_add_u32 v2, v2, v3
    v_bfe_u32 v3, v1, 1, 3
    v_lshlrev_b32 v3, 4, v3
    v_add_u32 v2, v2, v3
    v_add_u32 v8, {MEMB}, v2
    v_and_b32 v3, 1, v1
    v_cmp_eq_u32 vcc, 1, v3
    v_mov_b32 v9, 0x4444
    v_mov_b32 v3, 0xeeee
    v_cndmask_b32 v9, v9, v3, vcc
    v_lshlrev_b32 v10, 4, v1
    s_mul_i32 s15, s12, {NLDS*2048}
    v_add_u32 v10, s15, v10
    s_mov_b32 s38, 0                 ; step
    """)

def cst(A, i):
    if A.TS < 2: return
    if A.TS == 3 and i not in getattr(A, 'only', ()): return
    A(f"s_memrealtime s[98:99]\ns_waitcnt lgkmcnt(0)\ns_mov_b32 s{80+i}, s98")
def cst_flush(A):
    if A.TS < 2: return
    if A.TS == 3 and not getattr(A, 'only', ()): return
    A(f"""
    s_lshl_b32 s97, s38, 7
    s_add_u32 s97, s97, s13
    s_lshl_b32 s97, s97, 2
    s_add_u32 s97, s97, s12
    s_lshl_b32 s97, s97, 5
    s_add_u32 s97, s97, {TS0 + 65536}
    v_mov_b32 v2, s97
    """)
    for i in range(8): A(f"v_mov_b32 v{SC+88+i}, s{80+i}")
    A(f"""
    s_mov_b64 exec, 1
    global_store_dwordx4 v2, v[{SC+88}:{SC+91}], s[4:5]
    global_store_dwordx4 v2, v[{SC+92}:{SC+95}], s[4:5] offset:16
    s_mov_b64 exec, -1
    """)

def detect(A):
    lw = A.newlabel("detskip")
    A(f"""
    s_cmp_lg_u32 s13, 63
    s_cbranch_scc1 {lw}
    s_cmp_lg_u32 s12, 0
    s_cbranch_scc1 {lw}
    s_bitcmp1_b32 s3, 3
    s_cbranch_scc0 {lw}
    """)
    for half in range(2):
        A(f"s_mov_b32 s{52+half}, 0x7fffffff")
        for smp in range(6):
            off = half*8192 + (smp % 4)*16384 + 7680 + (smp//4)*128
            A(f"""
            v_mov_b32 v2, {off}
            s_memtime s[54:55]
            s_waitcnt lgkmcnt(0)
            global_load_dword v3, v2, s[4:5] sc1
            s_waitcnt vmcnt(0)
            s_memtime s[56:57]
            s_waitcnt lgkmcnt(0)
            s_sub_u32 s56, s56, s54
            s_min_u32 s{52+half}, s{52+half}, s56
            """)
    A(f"""
    s_cmp_lt_u32 s53, s52
    s_cselect_b32 s60, 3, 2
    v_mov_b32 v2, {F_DET}
    v_mov_b32 v3, s60
    global_store_dword v2, v3, s[10:11] sc1
    """)
    A.label(lw)

def det_wait(A):
    mega.init_wait(A)
    lp = A.newlabel("detw")
    A.label(lp)
    A(f"""
    v_mov_b32 v2, 144
    global_load_dword v3, v2, s[6:7] sc0 sc1
    s_waitcnt vmcnt(0)
    v_readfirstlane_b32 s60, v3
    """)
    A.guard()
    A(f"""
    s_cmp_eq_u32 s60, 0
    s_cbranch_scc1 {lp}
    s_and_b32 s15, s60, 1
    s_lshl_b32 s15, s15, 13
    s_add_u32 s34, s4, s15
    s_addc_u32 s35, s5, 0
    """)

def load_mem0(A):
    l = A.newlabel("m0")
    A(f"""
    s_load_dwordx2 s[42:43], s[0:1], {KA['mem0']}
    v_and_b32 v2, 7, v0
    v_mul_u32_u24 v2, 1280, v2
    v_lshrrev_b32 v3, 3, v0
    v_lshlrev_b32 v3, 4, v3
    v_add_u32 v2, v2, v3
    v_lshlrev_b32 v3, 4, v0
    s_waitcnt lgkmcnt(0)
    global_load_dwordx4 v[{SC}:{SC+3}], v2, s[42:43]
    global_load_dwordx4 v[{SC+4}:{SC+7}], v2, s[42:43] offset:512
    s_cmp_ge_u32 s12, 2
    s_cbranch_scc1 {l}
    """)
    A(f"""
    global_load_dwordx4 v[{SC+8}:{SC+11}], v2, s[42:43] offset:1024
    s_waitcnt vmcnt(0)
    v_add_u32 v2, {MEMB + 8192}, v3
    ds_write_b128 v2, v[{SC+8}:{SC+11}]
    """)
    A.label(l)
    A(f"""
    s_waitcnt vmcnt(0)
    v_add_u32 v2, {MEMB}, v3
    ds_write_b128 v2, v[{SC}:{SC+3}]
    ds_write_b128 v2, v[{SC+4}:{SC+7}] offset:4096
    s_waitcnt lgkmcnt(0)
    """)


class LQ:
    def __init__(self, A, wpre=2): self.A = A; self.q = []; self.wpre = wpre
    def ds(self, instr, tag):
        self.A(instr); self.q.append(tag)
    def need(self, tag):
        if tag not in self.q: return
        last = max(i for i, t in enumerate(self.q) if t == tag)
        n = len(self.q) - 1 - last
        self.A(f"s_waitcnt lgkmcnt({min(n, 15)})")
        if n <= 15: del self.q[:last+1]
        else: raise Exception("lgkm overflow")
    def drain(self):
        self.A("s_waitcnt lgkmcnt(0)"); self.q = []


def main_ops(A, L, S, ops, wring0):
    lds_ops = [i for i, o in enumerate(ops) if o[2] >= NR]
    st = {'next': 2, 'wn': 0}
    res = []
    for i, (tag, ar_, fid, acc) in enumerate(ops):
        def f(tag=tag, ar_=ar_, fid=fid, acc=acc):
            n0 = len(A.lines)
            L.need(tag)
            if fid >= NR:
                L.need(('W', st['wn']))
                wr = wring0 + 8*(st['wn'] % 2)
                ws = f"v[{wr}:{wr+7}]"
            else:
                ws = wreg(fid)[0]
            A(f"v_smfmac_f32_16x16x64_bf16 v[{acc}:{acc+3}], v[{ar_}:{ar_+3}], {ws}, v9")
            S.mark_at = len(A.lines)
            extra = 0
            if fid >= NR:
                st['wn'] += 1
                if st['next'] < len(lds_ops):
                    n = st['next']; f2 = ops[lds_ops[n]][2]; r = wring0 + 8*(n % 2)
                    L.ds(f"ds_read_b128 v[{r}:{r+3}], v10 offset:{WL + (f2-NR)*2048}", ('W', n))
                    L.ds(f"ds_read_b128 v[{r+4}:{r+7}], v10 offset:{WL + (f2-NR)*2048 + 1024}", ('W', n))
                    st['next'] += 1; extra = 2
            return extra
        res.append(f)
    return res

def preW(A, ops, wring0):
    lds = [o[2] for o in ops if o[2] >= NR][:2]
    for n, fid in enumerate(lds):
        r = wring0 + 8*n
        A(f"ds_read_b128 v[{r}:{r+3}], v10 offset:{WL + (fid-NR)*2048}")
        A(f"ds_read_b128 v[{r+4}:{r+7}], v10 offset:{WL + (fid-NR)*2048 + 1024}")

def pub_txt(A, wave, foff_s, val_expr):
    def f():
        sk = A.newlabel("pub")
        A(f"""
        s_cmp_lg_u32 s12, {wave}
        s_cbranch_scc1 {sk}
        {val_expr}
        v_mov_b32 v2, s{foff_s}
        v_mov_b32 v3, s33
        s_mov_b64 exec, 1
        global_store_dword v2, v3, s[10:11] sc1
        s_mov_b64 exec, -1
        """)
        A.label(sk)
    return f


HU_PHYS = 44*16384

NC = 20
def hu_setup(A, _=None):
    A(f"s_add_u32 s54, s34, {HU_PHYS}\ns_addc_u32 s55, s35, 0")
    A("s_cmp_eq_u32 s18, 0\ns_cselect_b32 s56, s12, 99")

def hu_wait(A, off, need_expr, wave=0, vt=2):
    lp = A.newlabel("hu"); sk = A.newlabel("husk")
    if wave is not None: A(f"s_cmp_lg_u32 s12, {wave}\ns_cbranch_scc1 {sk}")
    A(need_expr)
    A(f"v_mov_b32 v{vt+1}, {off}\ns_mov_b64 exec, 1")
    A.label(lp)
    A(f"global_load_dword v{vt}, v{vt+1}, s[54:55] sc1")
    A.guard()
    A(f"s_waitcnt vmcnt(0)\nv_cmp_gt_i32 vcc, s33, v{vt}\ns_cbranch_vccnz {lp}\ns_mov_b64 exec, -1")
    A.label(sk)
    if wave is not None: A("s_barrier")

def hu_send(A, wave, off):
    def f():
        sk = A.newlabel("hus")
        A(f"""
        s_cmp_lg_u32 s56, {wave}
        s_cbranch_scc1 {sk}
        s_add_u32 s33, s38, 1
        v_mov_b32 v2, {off}
        v_mov_b32 v3, s33
        s_mov_b64 exec, 1
        global_store_dword v2, v3, s[54:55] sc1
        s_mov_b64 exec, -1
        """)
        A.label(sk)
    return f

def advance(A):
    A(f"""
    s_add_u32 s34, s34, {CH_STEP}
    s_addc_u32 s35, s35, 0
    s_and_b32 s25, s38, 1
    s_lshl_b32 s25, s25, 13
    s_xor_b32 s34, s34, s25
    s_add_u32 s38, s38, 1
    """)

def e1_poll(A, tag, sets, tmp, gap=1):
    def ld(t):
        A(f"""
        global_load_dwordx4 v[{t[0]}:{t[0]+3}], v4, s[34:35] sc1
        global_load_dwordx4 v[{t[1]}:{t[1]+3}], v4, s[34:35] offset:1024 sc1
        global_load_dwordx2 v[{t[2]}:{t[2]+1}], v5, s[34:35] sc1
        """)
    ld(sets[0])
    if gap < 0:
        t = sets[0]
        r = list(range(t[0], t[0]+4)) + list(range(t[1], t[1]+4)) + [t[2], t[2]+1]
        A.label(f".Le1{tag}0")
        A(f"""
        s_waitcnt vmcnt(0)
        ds_write_b128 v6, v[{t[0]}:{t[0]+3}]
        ds_write_b128 v6, v[{t[1]}:{t[1]+3}] offset:1024
        ds_write_b64 v7, v[{t[2]}:{t[2]+1}]
        v_max3_u32 v{tmp}, v{r[0]}, v{r[1]}, v{r[2]}
        v_max3_u32 v{tmp+1}, v{r[3]}, v{r[4]}, v{r[5]}
        v_max3_u32 v{tmp}, v{tmp}, v{r[6]}, v{r[7]}
        v_max3_u32 v{tmp+1}, v{tmp+1}, v{r[8]}, v{r[9]}
        v_max_u32 v{tmp}, v{tmp}, v{tmp+1}
        v_cmp_eq_u32 vcc, -1, v{tmp}
        s_waitcnt lgkmcnt(0)
        s_cbranch_vccz .Le1ok{tag}
        """)
        if A.TS: A("s_add_u32 s94, s94, 1")
        ld(t)
        A.guard()
        A(f"s_branch .Le1{tag}0")
        A.label(f".Le1ok{tag}")
        cst(A, 0)
        return
    if gap: A(f"s_sleep {gap}")
    ld(sets[1])
    for k in range(2):
        t = sets[k]
        r = list(range(t[0], t[0]+4)) + list(range(t[1], t[1]+4)) + [t[2], t[2]+1]
        A.label(f".Le1{tag}{k}")
        A(f"""
        s_waitcnt vmcnt(3)
        ds_write_b128 v6, v[{t[0]}:{t[0]+3}]
        ds_write_b128 v6, v[{t[1]}:{t[1]+3}] offset:1024
        ds_write_b64 v7, v[{t[2]}:{t[2]+1}]
        v_max3_u32 v{tmp}, v{r[0]}, v{r[1]}, v{r[2]}
        v_max3_u32 v{tmp+1}, v{r[3]}, v{r[4]}, v{r[5]}
        v_max3_u32 v{tmp}, v{tmp}, v{r[6]}, v{r[7]}
        v_max3_u32 v{tmp+1}, v{tmp+1}, v{r[8]}, v{r[9]}
        v_max_u32 v{tmp}, v{tmp}, v{tmp+1}
        v_cmp_eq_u32 vcc, -1, v{tmp}
        s_waitcnt lgkmcnt(0)
        s_cbranch_vccz .Le1ok{tag}
        """)
        if A.TS: A("s_add_u32 s94, s94, 1")
        ld(t)
        A.guard()
        if k == 1: A(f"s_branch .Le1{tag}0")
    A.label(f".Le1ok{tag}")
    cst(A, 0)

def e1_poll2(A, tag, sets, tmp):
    A("s_add_u32 s36, s34, 16384\ns_addc_u32 s37, s35, 0")
    A.label(f".Le1{tag}0")
    for q, t in enumerate(sets):
        base = "s[34:35]" if q == 0 else "s[36:37]"
        A(f"""
        global_load_dwordx4 v[{t[0]}:{t[0]+3}], v4, {base} sc1
        global_load_dwordx4 v[{t[1]}:{t[1]+3}], v4, {base} offset:1024 sc1
        global_load_dwordx2 v[{t[2]}:{t[2]+1}], v5, {base} sc1
        """)
    A.guard()
    for q, t in enumerate(sets):
        r = list(range(t[0], t[0]+4)) + list(range(t[1], t[1]+4)) + [t[2], t[2]+1]
        A(f"""
        s_waitcnt vmcnt({3*(1-q)})
        ds_write_b128 v6, v[{t[0]}:{t[0]+3}] offset:{2560*q}
        ds_write_b128 v6, v[{t[1]}:{t[1]+3}] offset:{2560*q+1024}
        ds_write_b64 v7, v[{t[2]}:{t[2]+1}] offset:{2560*q}
        """)
        if q == 0:
            A(f"v_max3_u32 v{tmp}, v{r[0]}, v{r[1]}, v{r[2]}\nv_max3_u32 v{tmp+1}, v{r[3]}, v{r[4]}, v{r[5]}")
            A(f"v_max3_u32 v{tmp}, v{tmp}, v{r[6]}, v{r[7]}\nv_max3_u32 v{tmp+1}, v{tmp+1}, v{r[8]}, v{r[9]}")
        else:
            for i in range(5): A(f"v_max3_u32 v{tmp+i%2}, v{tmp+i%2}, v{r[2*i]}, v{r[2*i+1]}")
    if A.TS: A("s_add_u32 s94, s94, 1")
    A(f"v_max_u32 v{tmp}, v{tmp}, v{tmp+1}\nv_cmp_eq_u32 vcc, -1, v{tmp}\ns_waitcnt lgkmcnt(0)\ns_cbranch_vccnz .Le1{tag}0")
    if A.TS: A("s_sub_u32 s94, s94, 1")
    cst(A, 0)

def assign_fids(seq, ldsset):
    fid = {}; a = 0; b = NR
    for i, k in enumerate(seq):
        if i in ldsset: fid[k] = b; b += 1
        else: fid[k] = a; a += 1
    assert a == NR and b == 60
    return fid

def gen_V(A, opts):
    A.comment("==== chain V role")
    A.only = (7,) if opts.get('tsv') else ()
    A(f"""
    s_load_dwordx4 s[48:51], s[0:1], {KA['Wv']}
    s_lshr_b32 s18, s13, 1
    s_mul_i32 s16, s18, 384
    s_mul_i32 s17, s18, {192*1280}
    s_waitcnt lgkmcnt(0)
    s_add_u32 s48, s48, s16
    s_addc_u32 s49, s49, 0
    s_add_u32 s50, s50, s17
    s_addc_u32 s51, s51, 0
    """)
    seq = [('v', t, j) for t in range(10) for j in range(3)] + [('o', u, j) for j in range(10) for u in range(3)]
    fid = assign_fids(seq, [3, 8, 13, 18, 23, 28, 33, 38, 43, 48, 53, 58])
    load_sparse_weights(A, 50, 1280, 192, 10, lambda w, j: 10*w + j, 10, lambda t, j: fid[('o', t, j)], frag_dest, 64, 2, hold=opts.get('holdC', -1))
    load_sparse_weights(A, 48, 12288, 640, 3, lambda w, j: 3*w + j, 3, lambda t, j: fid[('v', t, j)], frag_dest, 128, 3)
    spill_lds_frags(A)
    A.stamp(1)
    common_setup(A)
    load_mem0(A)
    s = SC
    A(f"""
    v_and_b32 v2, 15, v1
    v_lshrrev_b32 v3, 3, v2
    v_lshlrev_b32 v3, 7, v3
    v_and_b32 v2, 7, v2
    v_lshlrev_b32 v2, 1, v2
    v_add_u32 v2, v2, v3
    v_lshrrev_b32 v3, 4, v1
    v_lshlrev_b32 v3, 5, v3
    v_add_u32 v2, v2, v3
    s_mul_i32 s25, s12, 768
    s_add_u32 s25, s25, {VF}
    v_add_u32 v21, s25, v2
    v_add_u32 v22, {VF - MEMB}, v8
    s_lshl_b32 s47, s18, {FS}
    s_add_u32 s47, s47, {F_Y}
    v_lshrrev_b32 v2, 4, v1
    v_lshlrev_b32 v2, 14, v2
    v_and_b32 v3, 15, v1
    v_lshlrev_b32 v3, 4, v3
    v_add_u32 v2, v2, v3
    s_mul_i32 s25, s12, {10*16384}
    s_lshl_b32 s23, s18, 8
    s_add_u32 s25, s25, s23
    s_add_u32 s25, s25, 65536
    v_add_u32 v23, s25, v2
    v_add_u32 v24, 65536, v23
    v_add_u32 v25, 65536, v24
    """)
    det_wait(A)
    hu_setup(A, "s_lshl_b32 s56, s18, 7\ns_add_u32 s56, s56, 4096")
    A.stamp(2)
    ACC = s; AS = s + 40; WR = s + 80; PK = AS + 12
    ops1 = [(('A', t), AS + 4*t, fid[('v', t, j)], ACC + 4*j) for t in range(10) for j in range(3)]
    ops2 = [(('A', u), AS + 4*u, fid[('o', u, j)], ACC + 4*j) for j in range(10) for u in range(3)]
    def pre():
        for i in range(40): A(f"v_mov_b32 v{ACC+i}, 0")
        preW(A, ops1, WR)
    pre()
    A("s_waitcnt lgkmcnt(0)\ns_branch .LV_go")
    A.label(".LV_step")
    pre()
    hu_wait(A, 1024, "s_mov_b32 s33, s38")
    if opts.get('d1', 0): A(f"s_sleep {opts.get('d1', 0)}")
    e1_poll(A, "V", [(ACC+12, ACC+16, ACC+20), (ACC+24, ACC+28, ACC+22)], 2, opts.get("gap1", -1))
    A.label(".LV_go")
    A("s_barrier")
    cst(A, 1)
    L = LQ(A); S = Sched(A, L)
    for t in range(10): L.ds(f"ds_read_b128 v[{AS+4*t}:{AS+4*t+3}], v8 offset:{t*1024}", ('A', t))
    S.q([S.ins("s_waitcnt vmcnt(0)", minop=12)] + [S.ins(f"v_mov_b32 v{ACC+i}, 0") for i in range(12, 32)] +
        [Atom(pub_txt(A, 1, 47, "s_mov_b32 s33, s38"), cost=2)])
    ex = []
    for j in range(3):
        a = ACC + 4*j
        ex += [S.ins(f"v_add_f32 v{a}, v{a}, v{a+1}", after=[(('op', 27+j), 8)]),
               S.ins(f"v_add_f32 v{a+2}, v{a+2}, v{a+3}"),
               S.ins(f"v_cvt_pk_bf16_f32 v{PK+j}, v{a}, v{a+2}"),
               S.ins(f"ds_write_b16 v21, v{PK+j} offset:{256*j}"),
               S.ins(f"ds_write_b16_d16_hi v21, v{PK+j} offset:{256*j+16}")]
    ex += [S.ins(f"v_mov_b32 v{ACC+i}, 0") for i in range(12)]
    huy = opts.get('huy', 25)
    S.q([Atom(lambda: preW(A, ops2, WR), minop=29)])
    S.q(ex)
    S.run(main_ops(A, L, S, ops1, WR))
    cst(A, 2)
    A("s_waitcnt lgkmcnt(0)\ns_barrier")
    cst(A, 3)
    L = LQ(A); S = Sched(A, L)
    for u in range(3): L.ds(f"ds_read_b128 v[{AS+4*u}:{AS+4*u+3}], v22 offset:{u*1024}", ('A', u))
    ep = []
    for j in range(10):
        a = ACC + 4*j
        m = j // 4; r = PK + 4*m
        ep += [S.ins(f"v_add_f32 v{a+1}, v{a}, v{a+1}", after=[(('op', 3*j+2), 8)]),
               S.ins(f"v_add_f32 v{a+2}, v{a+2}, v{a+3}"),
               S.ins(f"v_cvt_pk_bf16_f32 v{r+j%4}, v{a+1}, v{a+2}", mark=('cv', j))]
        if j % 4 == 3 or j == 9:
            ep += [S.ins(f"v_permlane32_swap_b32 v{r}, v{r+2}", after=[(('cv', j), 2)]),
                   S.ins(f"v_permlane32_swap_b32 v{r+1}, v{r+3}", mark=('p1', m)),
                   S.ins(f"v_permlane16_swap_b32 v{r}, v{r+1}", after=[(('p1', m), 2)]),
                   S.ins(f"v_permlane16_swap_b32 v{r+2}, v{r+3}")]
            if m == 2: ep.append(S.ins("s_mov_b32 exec_hi, 0", minop=29))
            ep.append(S.ins(f"global_store_dwordx4 v{23+m}, v[{r}:{r+3}], s[34:35] sc1"))
    S.q(ep)
    S.run(main_ops(A, L, S, ops2, WR))
    A("s_mov_b64 exec, -1")
    cst(A, 4); cst(A, 5); cst(A, 6); cst(A, 7)
    A("s_cmp_ge_u32 s38, 63\ns_cbranch_scc1 .LV_fin")
    advance(A)
    cst_flush(A)
    A("s_branch .LV_step")
    A.label(".LV_fin")
    A("s_waitcnt vmcnt(0)\ns_barrier\ns_mov_b32 s38, 64")
    A.publish(47, 38)
    A.stamp(3)
    A("s_branch .Lend")

def gen_C(A, opts):
    A.comment("==== chain C role")
    A.only = (7,)
    s = SC
    A(f"""
    s_sub_u32 s18, s13, 64
    v_and_b32 v3, 1, v1
    v_cmp_eq_u32 vcc, 1, v3
    v_mov_b32 v9, 0x4444
    v_mov_b32 v3, 0xeeee
    v_cndmask_b32 v9, v9, v3, vcc
    v_lshrrev_b32 v2, 5, v1
    v_mul_u32_u24 v2, 640, v2
    v_and_b32 v3, 31, v1
    v_lshlrev_b32 v3, 4, v3
    v_add_u32 v2, v2, v3
    s_mul_i32 s23, s12, 16384
    v_add_u32 v11, s23, v2
    v_lshrrev_b32 v2, 4, v1
    v_mul_u32_u24 v2, 1280, v2
    v_and_b32 v3, 15, v1
    v_lshlrev_b32 v3, 3, v3
    v_add_u32 v2, v2, v3
    v_add_u32 v2, 512, v2
    v_add_u32 v12, s23, v2
    v_lshlrev_b32 v2, 4, v1
    s_lshl_b32 s25, s18, {15 if NC == 20 else 14}
    s_lshl_b32 s23, s12, 11
    s_add_u32 s25, s25, s23
    s_add_u32 s25, s25, 65536
    v_add_u32 v13, s25, v2
    v_add_u32 v14, 16384, v13
    v_and_b32 v3, 15, v1
    v_lshlrev_b32 v3, 6, v3
    v_lshrrev_b32 v2, 4, v1
    v_lshlrev_b32 v2, 4, v2
    v_add_u32 v2, v2, v3
    s_lshl_b32 s25, s18, {16 if NC == 20 else 15}
    s_lshl_b32 s23, s12, 13
    s_add_u32 s25, s25, s23
    v_add_u32 v15, s25, v2
    v_add_u32 v17, 4096, v15
    v_add_u32 v18, 32768, v15
    v_add_u32 v19, 32768, v17
    v_lshrrev_b32 v2, 4, v1
    v_lshlrev_b32 v2, 8, v2
    v_and_b32 v3, 15, v1
    v_lshlrev_b32 v3, 2, v3
    v_add_u32 v2, v2, v3
    s_lshl_b32 s25, s12, 10
    v_add_u32 v20, s25, v2
    v_lshrrev_b32 v2, 3, v1
    v_lshlrev_b32 v21, 7, v2
    v_and_b32 v3, 7, v1
    v_lshlrev_b32 v3, 3, v3
    v_add_u32 v21, v21, v3
    s_lshl_b32 s25, s12, 6
    v_add_u32 v21, s25, v21
    v_and_b32 v3, 3, v2
    v_lshlrev_b32 v3, 1, v3
    v_lshrrev_b32 v2, 2, v2
    v_add_u32 v2, v2, v3
    v_lshlrev_b32 v2, 4, v2
    v_bfe_u32 v3, v1, 2, 1
    v_lshlrev_b32 v3, 7, v3
    v_add_u32 v2, v2, v3
    v_and_b32 v3, 3, v1
    v_lshlrev_b32 v3, 2, v3
    v_add_u32 v2, v2, v3
    s_lshl_b32 s25, s18, {1 if NC == 20 else 0}
    s_and_b32 s23, s12, {1 if NC == 20 else 0}
    s_add_u32 s25, s25, s23
    s_lshl_b32 s25, s25, 8
    s_mul_i32 s23, s25, 1639
    s_lshr_b32 s23, s23, 22
    s_mul_i32 s23, s23, {16384 - 2560}
    s_add_u32 s25, s25, s23
    s_add_u32 s25, s25, 5120
    v_add_u32 v22, s25, v2
    v_and_b32 v23, 31, v1
    v_lshlrev_b32 v23, 7, v23            ; S flags
    v_add_u32 v24, 4096, v23             ; Y flags
    s_add_u32 s40, s4, {UT0}
    s_addc_u32 s41, s5, 0
    s_mov_b32 s46, 0
    s_mov_b32 s38, 0
    """)
    det_wait(A)
    hu_setup(A, "s_lshl_b32 s56, s18, 7\ns_add_u32 s56, s56, 16384")
    UU = s + 36; C0 = s + 100
    NT = 640 // (16*NC)
    A("v_lshlrev_b32 v23, 7, v1")
    A.label(".LC_step")
    if A.TS:
        for k, it in enumerate((1, 16, 60)):
            sk = A.newlabel("si")
            A(f"s_cmp_lg_u32 s38, {it}\ns_cbranch_scc1 {sk}")
            A.stamp(4+k)
            A.label(sk)
    A("s_add_u32 s33, s38, 1")
    A.wait_prog(F_U, 32, 33, 46)
    for t in range(NT):
        for hh in range(8):
            r = UU + t*32 + hh*4
            A(f"global_load_dwordx4 v[{r}:{r+3}], v{[15, 17, 18, 19][2*t + hh//4]}, s[40:41] offset:{(hh%4)*1024} sc1")
    A.addbase(40, 32*40960)
    if opts.get('pt', 0):
        A(f"s_lshl_b32 s25, s12, 14\nv_mov_b32 v3, s25\ns_mov_b64 exec, 1\nglobal_load_dword v2, v3, s[34:35] offset:{7680-4096} sc1\ns_mov_b64 exec, -1".replace("v_mov_b32 v3, s25", "s_add_u32 s25, s25, 4096\nv_mov_b32 v3, s25"))
    cst(A, 0)
    ldY = f"""
    global_load_dwordx4 v[{s+20}:{s+23}], v13, s[34:35] sc1
    global_load_dwordx4 v[{s+24}:{s+27}], v13, s[34:35] offset:1024 sc1
    """
    if NT == 2: ldY += f"""
    global_load_dwordx4 v[{s+28}:{s+31}], v14, s[34:35] sc1
    global_load_dwordx4 v[{s+32}:{s+35}], v14, s[34:35] offset:1024 sc1
    """
    hu_wait(A, 0, "s_add_u32 s33, s38, 1", wave=2)
    cst(A, 1)
    if opts.get('hum', 0) < 0: hu_send(A, 3, 1024)()
    A(ldY)
    if opts.get('d2', 0): A(f"s_sleep {opts.get('d2', 0)}")
    cst(A, 5)
    hum = opts.get('hum', 0)
    PB = [s, s + 112]
    def ldP(b):
        A(f"""
        global_load_dwordx2 v[{b+16}:{b+17}], v12, s[34:35] sc1
        global_load_dwordx2 v[{b+18}:{b+19}], v12, s[34:35] offset:640 sc1
        global_load_dwordx4 v[{b}:{b+3}], v11, s[34:35] sc1
        global_load_dwordx4 v[{b+4}:{b+7}], v11, s[34:35] offset:1280 sc1
        global_load_dwordx4 v[{b+8}:{b+11}], v11, s[34:35] offset:2560 sc1
        global_load_dwordx4 v[{b+12}:{b+15}], v11, s[34:35] offset:3840 sc1
        """)
    sm = lambda c_, a_, b_: A(f"v_smfmac_f32_16x16x64_bf16 v[{c_}:{c_+3}], v[{a_}:{a_+3}], v[{b_}:{b_+7}], v9")
    if hum == 0: hu_send(A, 3, 1024)()
    ldP(PB[0])
    PIPE = opts.get('pipe', 0)
    X = 6 if PIPE else 0
    if hum >= 3:
        sk = A.newlabel("hd")
        A(f"s_cmp_lg_u32 s56, 3\ns_cbranch_scc1 {sk}\ns_sleep {hum-2}")
        hu_send(A, 3, 1024)()
        A.label(sk)
    if hum == 1: hu_send(A, 3, 1024)()
    if PIPE: ldP(PB[1])
    A(f"s_waitcnt vmcnt({6+X})")
    yr = list(range(s+20, s+20+8*NT))
    A.label(".LC_yc")
    maxtree(A, yr, 2)
    A("s_cbranch_vccz .LC_pA")
    if A.TS: A("s_add_u32 s94, s94, 0x10000")
    A(ldY)
    A.guard()
    A("s_waitcnt vmcnt(0)\ns_branch .LC_yc")
    for k in range(2 if PIPE else 1):
        b_ = PB[k]
        A.label(f".LC_p{'AB'[k]}")
        for i in range(8): A(f"v_mov_b32 v{C0+i}, 0")
        A(f"s_waitcnt vmcnt({4+X})")
        sm(C0, b_+16, s+20); A(f"v_max_u32 v2, v{b_+16}, v{b_+17}")
        if NT == 2: sm(C0+4, b_+16, s+28)
        A(f"v_max_u32 v3, v{b_+18}, v{b_+19}")
        for tk in range(4):
            A(f"s_waitcnt vmcnt({3+X-tk})")
            sm(C0, b_+4*tk, UU+8*tk); A(f"v_max3_u32 v2, v2, v{b_+4*tk}, v{b_+4*tk+1}")
            if NT == 2: sm(C0+4, b_+4*tk, UU+32+8*tk)
            A(f"v_max3_u32 v3, v3, v{b_+4*tk+2}, v{b_+4*tk+3}")
        A(f"v_max_u32 v2, v2, v3\nv_cmp_eq_u32 vcc, -1, v2\ns_nop 3\ns_cbranch_vccz .LC_ok")
        if A.TS: A("s_add_u32 s94, s94, 1")
        ldP(b_)
        A.guard()
        if k == 1 or not PIPE: A("s_branch .LC_pA")
    A.label(".LC_ok")
    if hum == 2: hu_send(A, 3, 1024)()
    s = SC + 136
    cst(A, 6)
    A(f"""
    v_add_f32 v{s}, v{C0}, v{C0+1}
    v_add_f32 v{s+1}, v{C0+2}, v{C0+3}
    ds_write_b32 v20, v{s}
    ds_write_b32 v20, v{s+1} offset:128
    v_add_f32 v{s+2}, v{C0+4}, v{C0+5}
    v_add_f32 v{s+3}, v{C0+6}, v{C0+7}
    ds_write_b32 v20, v{s+2} offset:64
    ds_write_b32 v20, v{s+3} offset:192
    """)
    advance(A)
    A(f"""
    s_cmp_gt_u32 s12, {NT-1}
    s_waitcnt lgkmcnt(0)
    s_barrier
    s_cbranch_scc1 .LmpC
    ds_read_b64 v[{s}:{s+1}], v21
    ds_read_b64 v[{s+2}:{s+3}], v21 offset:1024
    ds_read_b64 v[{s+4}:{s+5}], v21 offset:2048
    ds_read_b64 v[{s+6}:{s+7}], v21 offset:3072
    s_waitcnt lgkmcnt(2)
    v_add_f32 v{s}, v{s}, v{s+2}
    v_add_f32 v{s+1}, v{s+1}, v{s+3}
    s_waitcnt lgkmcnt(0)
    v_add_f32 v{s+4}, v{s+4}, v{s+6}
    v_add_f32 v{s+5}, v{s+5}, v{s+7}
    v_add_f32 v{s}, v{s}, v{s+4}
    v_add_f32 v{s+1}, v{s+1}, v{s+5}
    v_cvt_pk_bf16_f32 v{s}, v{s}, v{s+1}
    global_store_dword v22, v{s}, s[34:35] sc1
    """)
    A.label(".LmpC")
    cst(A, 7)
    cst_flush(A)
    A("s_barrier")
    A("s_cmp_lt_u32 s38, 63\ns_cbranch_scc1 .LC_step")
    A.stamp(3)
    A("s_branch .Lend")

def gen_S(A, opts):
    A.comment("==== chain S role")
    A.only = (5,) if opts.get('tsv') else ()
    A(f"""
    s_load_dwordx4 s[48:51], s[0:1], {KA['Wq']}
    s_lshr_b32 s18, s13, 1
    s_mul_i32 s16, s18, 384
    s_waitcnt lgkmcnt(0)
    s_add_u32 s48, s48, s16
    s_addc_u32 s49, s49, 0
    s_add_u32 s50, s50, s16
    s_addc_u32 s51, s51, 0
    """)
    seq = [(t, j) for t in range(10) for j in range(3)] + [(t, 3+j) for t in range(10) for j in range(3)]
    fid = assign_fids(seq, [1, 4, 7, 10, 13, 16, 19, 22, 25, 28, 31, 34])
    load_sparse_weights(A, 48, 12288, 640, 3, lambda w, j: 3*w + j, 3, lambda t, j: fid[(t, j)], frag_dest, 128, 3, hold=opts.get('holdC', -1))
    load_sparse_weights(A, 50, 12288, 640, 3, lambda w, j: 3*w + j, 3, lambda t, j: fid[(t, 3+j)], frag_dest, 128, 3)
    spill_lds_frags(A)
    A.stamp(1)
    common_setup(A)
    load_mem0(A)
    s = SC
    A(f"""
    v_and_b32 v2, 15, v1               ; n
    v_lshrrev_b32 v3, 3, v2            ; g>>1
    v_lshlrev_b32 v{s}, 8, v3
    v_bfe_u32 v3, v2, 1, 1             ; half
    v_lshlrev_b32 v3, 4, v3
    v_add_u32 v{s}, v{s}, v3
    v_bfe_u32 v3, v2, 2, 1             ; g&1
    v_lshlrev_b32 v3, 3, v3
    v_add_u32 v{s}, v{s}, v3
    v_and_b32 v3, 1, v2
    v_lshlrev_b32 v3, 1, v3
    v_add_u32 v{s}, v{s}, v3
    v_lshrrev_b32 v3, 4, v1            ; g' -> row 2g' * 32
    v_lshlrev_b32 v{s+2}, 6, v3
    v_add_u32 v{s}, v{s}, v{s+2}
    v_lshrrev_b32 v{s+1}, 2, v2        ; g
    v_lshlrev_b32 v{s+1}, 7, v{s+1}
    v_lshlrev_b32 v{s+2}, 5, v3        ; i*16 = 2g'*16
    v_add_u32 v{s+1}, v{s+1}, v{s+2}
    v_and_b32 v3, 3, v2
    v_lshlrev_b32 v3, 1, v3
    v_add_u32 v{s+1}, v{s+1}, v3
    """)
    for w in range(4):
        l = A.newlabel("qw")
        A(f"s_cmp_lg_u32 s12, {w}\ns_cbranch_scc1 {l}")
        for j in range(3):
            T = 3*w + j
            c, th = [(c, h) for c in range(6) for h in range(2) if PAIRS[c][h] == T][0]
            A(f"v_add_u32 v{21+j}, {QF + (c>>1)*1024 + (c&1)*512 + th*4}, v{s}")
            A(f"v_add_u32 v{24+j}, {KM + c*512 + th*8}, v{s+1}")
        A.label(l)
    A(f"""
    v_lshlrev_b32 v27, 4, v1
    v_and_b32 v2, 15, v1
    v_lshrrev_b32 v3, 2, v2
    v_lshlrev_b32 v3, 2, v3
    v_and_b32 v{s}, 1, v2
    v_lshlrev_b32 v{s}, 1, v{s}
    v_add_u32 v3, v3, v{s}             ; tok
    v_and_b32 v{s}, 48, v1
    v_add_u32 v3, v3, v{s}             ; g*16+tok
    v_bfe_u32 v{s}, v2, 1, 1           ; tt
    v_mul_u32_u24 v{s}, 6144, v{s}
    v_lshlrev_b32 v28, 4, v3
    v_add_u32 v28, v28, v{s}
    v_lshlrev_b32 v29, 3, v3
    v_add_u32 v29, v29, v{s}
    v_add_u32 v29, {KB + 4096}, v29
    v_add_u32 v28, {KB}, v28
    s_mov_b32 s57, 12288
    s_lshr_b32 s25, s18, 3
    s_mul_i32 s25, s25, 16384
    s_and_b32 s23, s18, 7
    s_mul_i32 s23, s23, 640
    s_add_u32 s25, s25, s23
    s_and_b32 s23, s12, 1
    s_lshl_b32 s23, s23, 2
    v_lshrrev_b32 v3, 4, v1
    v_add_u32 v3, s23, v3              ; i' = g' + 4p
    v_lshrrev_b32 v{s}, 3, v2
    v_lshlrev_b32 v{s}, 8, v{s}
    v_lshlrev_b32 v{s+1}, 5, v3
    v_add_u32 v{s}, v{s}, v{s+1}
    v_and_b32 v{s+1}, 1, v2
    v_lshlrev_b32 v{s+1}, 4, v{s+1}
    v_add_u32 v{s}, v{s}, v{s+1}
    v_bfe_u32 v{s+1}, v2, 1, 2
    v_lshlrev_b32 v{s+1}, 2, v{s+1}
    v_add_u32 v{s}, v{s}, v{s+1}
    v_add_u32 v30, s25, v{s}
    v_lshlrev_b32 v{s}, 4, v3
    v_bfe_u32 v{s+1}, v2, 1, 1
    v_lshlrev_b32 v{s+1}, 3, v{s+1}
    v_add_u32 v{s}, v{s}, v{s+1}
    v_bfe_u32 v{s+1}, v2, 2, 1
    v_lshlrev_b32 v{s+1}, 2, v{s+1}
    v_add_u32 v{s}, v{s}, v{s+1}
    v_add_u32 v{s}, 512, v{s}
    v_add_u32 v31, s25, v{s}
    v_and_b32 v3, 9, v1
    v_cmp_eq_u32 vcc, 0, v3
    s_mov_b64 s[62:63], vcc            ; n even & n<8
    v_cmp_gt_u32 vcc, 8, v2
    s_mov_b64 s[64:65], vcc            ; n<8
    s_mul_i32 s25, s18, 12288
    s_add_u32 s23, s25, {K0}
    s_add_u32 s66, s4, s23
    s_addc_u32 s67, s5, 0
    s_add_u32 s23, s25, {Q0}
    s_add_u32 s68, s4, s23
    s_addc_u32 s69, s5, 0
    s_mul_i32 s25, s18, 2560
    s_add_u32 s25, s25, {PT0}
    s_add_u32 s70, s4, s25
    s_addc_u32 s71, s5, 0
    s_lshl_b32 s47, s18, {FS}
    s_add_u32 s72, s47, {F_Q + 2048}
    s_add_u32 s72, s10, s72
    s_addc_u32 s73, s11, 0
    s_add_u32 s47, s47, {F_S}
    s_mov_b32 s74, 0
    s_mov_b32 s75, {KB}
    s_mov_b32 s76, {KB}                ; K buffer to fill next
    s_and_b32 s77, s12, 1
    s_mul_i32 s77, s77, 6144
    v_lshrrev_b32 v2, 4, v1
    v_lshlrev_b32 v2, 7, v2
    v_and_b32 v3, 7, v1
    v_lshlrev_b32 v3, 4, v3
    v_add_u32 v0, v2, v3
    v_add_u32 v0, {KM}, v0
    v_and_b32 v2, 7, v1
    v_lshlrev_b32 v2, 2, v2
    v_add_u32 v2, {FL}, v2
    v_mov_b32 v3, 0
    ds_write_b32 v2, v3
    s_mov_b32 s58, 0
    s_mov_b32 s59, 0
    """)
    def waitKQ():
        lp = A.newlabel("wkq"); done = A.newlabel("wkqd")
        A(f"s_cmp_ge_u32 s74, s33\ns_cbranch_scc1 {done}\nv_mov_b32 v2, 0")
        A.label(lp)
        A(f"""
        global_load_dword v3, v2, s[72:73] offset:-2048 sc1
        global_load_dword v{s+90}, v2, s[72:73] offset:2048 sc1
        s_waitcnt vmcnt(0)
        v_min_u32 v3, v3, v{s+90}
        s_nop 0
        v_readfirstlane_b32 s74, v3
        s_nop 3
        s_cmp_ge_u32 s74, s33
        s_cbranch_scc1 {done}
        s_sleep 2
        """)
        A.guard()
        A(f"s_branch {lp}")
        A.label(done)
    KT = KB ^ (KB + 12288)
    def dma6(ldsexpr, base):
        o = [ldsexpr, "v_add_u32 v3, s77, v27"]
        o += [f"global_load_lds_dwordx4 v3, s[{base}:{base+1}] offset:{i*1024} sc1" for i in range(4)]
        o += ["s_add_u32 m0, m0, 4096", "v_add_u32 v3, 4096, v3"]
        o += [f"global_load_lds_dwordx4 v3, s[{base}:{base+1}] offset:{i*1024} sc1" for i in range(2)]
        o += [f"s_add_u32 s{base}, s{base}, {32*12288}", f"s_addc_u32 s{base+1}, s{base+1}, 0"]
        return "\n".join(o)
    dmaK = lambda: A(dma6("s_add_u32 m0, s76, s77", 66) + f"\ns_xor_b32 s76, s76, {KT}")
    dmaQ = lambda: A(dma6(f"s_add_u32 m0, s77, {QB}", 68))
    A(f"""
    v_add_u32 v11, {QF}, v27
    v_and_b32 v12, 3, v1
    v_lshlrev_b32 v12, 2, v12
    v_add_u32 v12, {FL}, v12
    s_lshl_b32 s25, s12, 2
    s_add_u32 s25, s25, {FL}
    v_mov_b32 v13, s25
    v_add_u32 v14, 8, v29
    s_mul_i32 s22, s12, {16384*opts.get('e1s', 1)}
    v_add_u32 v4, s22, v4
    v_add_u32 v5, s22, v5
    s_mul_i32 s22, s12, {2560*opts.get('e1s', 1)}
    v_add_u32 v6, s22, v6
    v_add_u32 v7, s22, v7
    """)
    det_wait(A)
    hu_setup(A, "s_lshl_b32 s56, s18, 7")
    A("s_mov_b32 s33, 1")
    waitKQ()
    lk = A.newlabel("ikq"); lk2 = A.newlabel("ikq")
    A(f"s_cmp_lt_u32 s12, 2\ns_cbranch_scc1 {lk}")
    dmaQ(); A(f"s_branch {lk2}")
    A.label(lk); dmaK()
    A.label(lk2)
    A("s_waitcnt vmcnt(0)")
    A.stamp(2)
    AQ = s; AK = s + 12; AS = s + 24; WR = s + 64; SX = s + 80; X8 = s + 88; QFR = AS
    ops = [(('A', t), AS + 4*t, fid[(t, j)], AQ + 4*j) for t in range(10) for j in range(3)]
    ops += [(('A', t), AS + 4*t, fid[(t, 3+j)], AK + 4*j) for t in range(10) for j in range(3)]
    def pre():
        for i in range(24): A(f"v_mov_b32 v{AQ+i}, 0")
        for i in range(8): A(f"v_mov_b32 v{SX+i}, 0")
        preW(A, ops, WR)
        A("s_add_u32 s58, s58, 1\nv_mov_b32 v15, s58")
    pre()
    A("s_waitcnt lgkmcnt(0)\ns_branch .LS_go")
    A.label(".LS_step")
    E1S = opts.get('e1s', 1)
    if E1S: e1_poll2(A, "S", [(AS, AS+4, AS+8), (AS+12, AS+16, AS+10)], 2)
    else: e1_poll(A, "S", [(AS, AS+4, AS+8), None], 2, -1)
    A.label(".LS_go")
    A("s_barrier")
    cst(A, 1)
    CS = f2h(192**-0.5 * 1.4426950408889634)
    A("s_cmp_ge_u32 s12, 2\ns_cbranch_scc1 .LS_projB\ns_cmp_eq_u32 s12, 1\ns_cbranch_scc1 .LS_projA1")
    for var in ('A0', 'A1', 'B'):
        A.label(f".LS_proj{var}")
        L = LQ(A); S = Sched(A, L, K=opts.get('K', 2))
        for t in range(10): L.ds(f"ds_read_b128 v[{AS+4*t}:{AS+4*t+3}], v8 offset:{t*1024}", ('A', t))
        if var == 'B':
            S.q([S.ins("s_waitcnt vmcnt(0)", minop=45)])
            S.q([Atom(hu_send(A, 2, 0), minop=opts.get('hus', 40), cost=2)])
        def exch(j, opl):
            a = AQ + 4*j
            return [S.ins(f"v_add_f32 v{a}, v{a}, v{a+1}", after=[(('op', opl), 8)]),
                    S.ins(f"v_add_f32 v{a+2}, v{a+2}, v{a+3}"),
                    S.ins(f"v_cvt_pk_bf16_f32 v{a}, v{a}, v{a+2}"),
                    S.ds(f"ds_write_b16 v{21+j}, v{a}", 'X'),
                    S.ds(f"ds_write_b16_d16_hi v{21+j}, v{a} offset:{32 if j < 3 else 16}", 'X')]
        q1 = exch(0, 27) + exch(1, 28) + exch(2, 29)
        q1 += [S.ds("ds_write_b32 v13, v15", 'X', mark='qadd')]
        def bar():
            cst(A, 2)
            L.need('X'); A("s_barrier")
            cst(A, 3)
            if A.TS == 2: L.q = []
        q2 = exch(3, 57) + exch(4, 58) + exch(5, 59) + [Atom(bar)]
        if var != 'B':
            p = int(var[1])
            kxr = [X8, WR, WR + 8, AQ + 4, AS + 12, AS + 20]
            kxmin = [12, 31, 34, -1, 44, 50]
            def rk(n):
                u, ab = n // 2, n % 2
                b = kxr[n]
                o = []
                kw = dict(minop=kxmin[n])
                if n == 3: kw['after'] = [('qadd', 0)]
                for hc in range(2):
                    c = 2*u + hc
                    r = b + hc*4
                    if c < 4: o.append(S.ds(f"ds_read_b128 v[{r}:{r+3}], v28 offset:{c*1024 + ab*16}", ('kx', n), **kw))
                    else: o.append(S.ds(f"ds_read2st64_b64 v[{r}:{r+3}], v{29 if ab == 0 else 14} offset0:{2*(c-4)} offset1:{2*(c-4)+1}", ('kx', n), **kw))
                o[-1].mark = ('rk', n)
                return o
            def mx(n):
                u, ab = n // 2, n % 2
                b = kxr[n]
                def f():
                    L.need(('q', u)); L.need(('kx', n))
                    A(f"v_smfmac_f32_16x16x64_bf16 v[{SX+4*ab}:{SX+4*ab+3}], v[{QFR+4*u}:{QFR+4*u+3}], v[{b}:{b+7}], v9")
                return Atom(f, mf=True, mark=('mx', n), afterc=[(('rk', n), 90)])
            def qchk():
                ok = A.newlabel("qok"); lp = A.newlabel("qlp")
                L.need('fl')
                A(f"v_cmp_gt_u32 vcc, s58, v{AQ+3}\ns_cbranch_vccz {ok}")
                A.label(lp)
                A(f"ds_read_b32 v{AQ+3}, v12")
                for u in range(3): A(f"ds_read_b128 v[{QFR+4*u}:{QFR+4*u+3}], v11 offset:{u*1024}")
                A(f"s_waitcnt lgkmcnt(0)\nv_cmp_gt_u32 vcc, s58, v{AQ+3}\ns_cbranch_vccnz {lp}")
                A.label(ok)
            S.q(sum([rk(n) for n in range(6)], []))
            q1 += [S.ds(f"ds_read_b32 v{AQ+3}, v12", 'fl', minop=38, afterc=[('qadd', opts.get('qm', 24))])]
            q1 += [S.ds(f"ds_read_b128 v[{QFR+4*u}:{QFR+4*u+3}], v11 offset:{u*1024}", ('q', u), mark=('rq', u)) for u in range(3)]
            q1 += [Atom(qchk, cost=2, afterc=[(('rq', 0), 90)])]
            q1 += [mx(n) for n in range(6)]
            x = X8
            dpp = lambda op, v, m: f"{op}_dpp v{v}, v{v}, v{v} {m} row_mask:0xf bank_mask:0xf"
            q1 += [S.ins(f"v_add_f32 v{x}, v{SX+2*p}, v{SX+2*p+1}", after=[(('mx', 4), 8)]),
                   S.ins(f"v_mov_b32 v{x+4}, {CS}"),
                   S.ins(f"v_add_f32 v{x+1}, v{SX+4+2*p}, v{SX+4+2*p+1}", after=[(('mx', 5), 8)]),
                   S.ins(f"v_max_f32 v{x+2}, v{x}, v{x+1}", mark='m0')]
            for i, sh in enumerate((8, 4, 2, 1)):
                q1.append(S.ins(dpp("v_max_f32", x+2, f"row_ror:{sh}"), after=[(f'm{i}', 2)], mark=f'm{i+1}'))
            q1 += [S.ins(f"v_mul_f32 v{x+2}, v{x+2}, v{x+4}"),
                   S.ins(f"v_fma_f32 v{x}, v{x}, v{x+4}, -v{x+2}"),
                   S.ins(f"v_fma_f32 v{x+1}, v{x+1}, v{x+4}, -v{x+2}"),
                   S.ins(f"v_exp_f32 v{x}, v{x}"),
                   S.ins(f"v_exp_f32 v{x+1}, v{x+1}", mark='ex'),
                   S.ins(f"v_add_f32 v{x+3}, v{x}, v{x+1}", after=[('ex', 1)], mark='s0')]
            for i, sh in enumerate((8, 4, 2, 1)):
                q1.append(S.ins(dpp("v_add_f32", x+3, f"row_ror:{sh}"), after=[(f's{i}', 2)], mark=f's{i+1}'))
            SM = AK + 8
            kb = [WR, WR + 8, AK]
            for u in range(3):
                q2 += [S.ds(f"ds_read_b128 v[{kb[u]}:{kb[u]+3}], v0 offset:{2*u*512}", ('km', u), after=[(('mx', 2), 0)]),
                       S.ds(f"ds_read_b128 v[{kb[u]+4}:{kb[u]+7}], v0 offset:{(2*u+1)*512}", ('km', u), mark=('rkm', u))]
            q2 += [S.ins(f"v_mov_b32 v{SM+i}, 0") for i in range(4)]
            def mm(u):
                def f():
                    L.need(('km', u))
                    A(f"v_smfmac_f32_16x16x64_bf16 v[{SM}:{SM+3}], v[{QFR+4*u}:{QFR+4*u+3}], v[{kb[u]}:{kb[u]+7}], v9")
                return Atom(f, mf=True, mark=('mm', u), after=[(('rkm', 2), opts.get('mmw', 8))] if u == 0 else [])
            q2 += [mm(0), mm(1), mm(2), S.ins("s_nop 0", after=[(('mm', 2), 5)])]
        S.q(q2)
        S.q(q1)
        S.run(main_ops(A, L, S, ops, WR))
        if var != 'B':
            A("s_cmp_ge_u32 s38, 63\ns_cbranch_scc1 .LS_fin")
            y = x + 5
            z = AQ + 1
            def red8(v, op):
                for m in ("quad_perm:[1,0,3,2]", "quad_perm:[2,3,0,1]", "row_half_mirror"):
                    A("s_nop 1\n" + dpp(op, v, m))
            A(f"""
            v_add_f32 v{y}, v{SM+2*p}, v{SM+2*p+1}
            v_mul_f32 v{y}, v{y}, v{x+4}
            v_max_f32 v{y+1}, v{y}, v{x+2}
            """)
            red8(y+1, "v_max_f32")
            A(f"""
            v_sub_f32 v{y}, v{y}, v{y+1}
            v_sub_f32 v{y+2}, v{x+2}, v{y+1}
            v_exp_f32 v{y}, v{y}
            v_exp_f32 v{y+2}, v{y+2}
            v_mov_b32 v{z}, v{y}
            """)
            red8(z, "v_add_f32")
            A(f"""
            v_fmac_f32 v{z}, v{x+3}, v{y+2}
            v_rcp_f32 v{z}, v{z}
            s_nop 0
            v_mul_f32 v{y+2}, v{y+2}, v{z}
            v_mul_f32 v{y}, v{y}, v{z}
            v_mul_f32 v{x}, v{x}, v{y+2}
            v_mul_f32 v{x+1}, v{x+1}, v{y+2}
            v_mov_b32_dpp v{y+1}, v{y} quad_perm:[1,0,3,2] row_mask:0xf bank_mask:0xf
            v_cvt_pk_bf16_f32 v{x}, v{x}, v{x+1}
            global_store_dword v30, v{x}, s[34:35] sc1
            v_cvt_pk_bf16_f32 v{y}, v{y}, v{y+1}
            s_mov_b64 exec, s[62:63]
            global_store_dword v31, v{y}, s[34:35] sc1
            s_mov_b64 exec, -1
            """)
            cst(A, 4)
            A("s_add_u32 s33, s38, 2")
            waitKQ()
            dmaK()
            cst(A, 5)
            A("s_branch .LS_next")
    pub_txt(A, 3, 47, "s_mov_b32 s33, s38")()
    TA = s + 56
    A(f"""
    s_add_u32 s25, s77, {QB}
    v_add_u32 v2, s75, v27                 ; K chunks
    v_lshrrev_b32 v3, 1, v27
    v_add_u32 v{s+69}, s25, v3             ; Q singles
    v_add_u32 v3, s75, v3                  ; K singles
    v_add_u32 v{s+68}, s25, v27            ; Q chunks
    """)
    def rdt(c):
        b = s + 16*(c % 3)
        A(f"ds_read_b128 v[{b}:{b+3}], v0 offset:{c*512}")
        if c < 4:
            A(f"ds_read_b128 v[{b+4}:{b+7}], v2 offset:{c*1024}")
            A(f"ds_read_b128 v[{b+8}:{b+11}], v2 offset:{6144 + c*1024}")
            A(f"ds_read_b128 v[{b+12}:{b+15}], v{s+68} offset:{c*1024}")
        else:
            o = 8 + 2*(c-4)
            A(f"ds_read2st64_b64 v[{b+4}:{b+7}], v3 offset0:{o} offset1:{o+1}")
            A(f"ds_read2st64_b64 v[{b+8}:{b+11}], v3 offset0:{o+12} offset1:{o+13}")
            A(f"ds_read2st64_b64 v[{b+12}:{b+15}], v{s+69} offset0:{o} offset1:{o+1}")
    rdt(0); rdt(1)
    for c in range(6):
        if c + 2 < 6:
            rdt(c+2); A("s_waitcnt lgkmcnt(8)")
        else:
            A(f"s_waitcnt lgkmcnt({4*(5-c)})")
        b = s + 16*(c % 3)
        for t in range(3):
            a = TA + 4*t
            cs_ = "0" if c == 0 else f"v[{a}:{a+3}]"
            A(f"v_mfma_f32_16x16x32_bf16 v[{a}:{a+3}], v[{b+4*t}:{b+4*t+3}], v[{b+12}:{b+15}], {cs_}")
    x = s
    lq = A.newlabel("nq")
    A(f"s_cmp_ge_u32 s38, 63\ns_cbranch_scc1 {lq}\ns_add_u32 s33, s38, 2")
    waitKQ()
    dmaQ()
    A.label(lq)
    A(f"""
    s_sub_u32 s25, s12, 2
    s_lshl_b32 s25, s25, 4
    v_and_b32 v{x}, 15, v1
    v_add_u32 v{x}, s25, v{x}              ; q
    v_lshrrev_b32 v{x+1}, 4, v1
    v_lshlrev_b32 v{x+1}, 2, v{x+1}
    v_sub_u32 v{x}, v{x}, v{x+1}           ; q-4g (signed)
    v_mov_b32 v{x+2}, 0xff800000
    v_cmp_gt_u32 vcc, 32, v1
    s_nop 1
    """)
    for r in range(4): A(f"v_cndmask_b32 v{TA+r}, v{x+2}, v{TA+r}, vcc")
    for tt in range(2):
        for r in range(4):
            A(f"v_cmp_le_i32 vcc, {16*tt + r}, v{x}\ns_nop 1\nv_cndmask_b32 v{TA+4+4*tt+r}, v{x+2}, v{TA+4+4*tt+r}, vcc")
    A(f"v_max3_f32 v{x+3}, v{TA}, v{TA+1}, v{TA+2}")
    for i in range(3, 11, 2): A(f"v_max3_f32 v{x+3}, v{x+3}, v{TA+i}, v{TA+i+1}")
    A(f"v_max_f32 v{x+3}, v{x+3}, v{TA+11}")
    def allred(v, t, op):
        for sw in ("v_permlane32_swap_b32", "v_permlane16_swap_b32"):
            A(f"v_mov_b32 v{t}, v{v}\ns_nop 1\n{sw} v{v}, v{t}\ns_nop 1\n{op} v{v}, v{v}, v{t}")
    allred(x+3, x+4, "v_max_f32")
    A(f"v_mul_f32 v{x+3}, {CS}, v{x+3}\nv_mov_b32 v{x+4}, {CS}")
    for i in range(12): A(f"v_fma_f32 v{TA+i}, v{TA+i}, v{x+4}, -v{x+3}")
    for i in range(12): A(f"v_exp_f32 v{TA+i}, v{TA+i}")
    A(f"s_nop 0\nv_add_f32 v{x+3}, v{TA}, v{TA+1}")
    for i in range(2, 12): A(f"v_add_f32 v{x+3}, v{x+3}, v{TA+i}")
    allred(x+3, x+4, "v_add_f32")
    A(f"v_rcp_f32 v{x+3}, v{x+3}\ns_nop 0")
    for i in range(12): A(f"v_mul_f32 v{TA+i}, v{TA+i}, v{x+3}")
    for i in range(6): A(f"v_cvt_pk_bf16_f32 v{X8+i}, v{TA+2*i}, v{TA+2*i+1}")
    A(f"""
    s_sub_u32 s25, s12, 2
    s_lshl_b32 s23, s25, 10
    v_add_u32 v2, s23, v27
    global_store_dwordx4 v2, v[{X8+2}:{X8+5}], s[70:71] sc1
    v_and_b32 v3, 15, v1
    v_lshlrev_b32 v3, 4, v3
    v_lshrrev_b32 v2, 4, v1
    v_lshlrev_b32 v2, 3, v2
    v_add_u32 v2, v2, v3
    s_lshl_b32 s23, s25, 8
    v_add_u32 v2, s23, v2
    s_mov_b32 exec_hi, 0
    global_store_dwordx2 v2, v[{X8}:{X8+1}], s[70:71] offset:2048 sc1
    s_mov_b64 exec, -1
    s_add_u32 s70, s70, {32*2560}
    s_addc_u32 s71, s71, 0
    s_cmp_ge_u32 s38, 63
    s_cbranch_scc1 .LS_fin
    """)
    cst(A, 4); cst(A, 5)
    A.label(".LS_next")
    A(f"s_xor_b32 s75, s75, {KT}\nv_add_u32 v28, s57, v28\nv_add_u32 v29, s57, v29\nv_add_u32 v14, s57, v14\ns_sub_u32 s57, 0, s57")
    advance(A)
    cst(A, 6); cst(A, 7)
    cst_flush(A)
    pre()
    if E1S:
        A("s_cmp_lt_u32 s12, 2\ns_cbranch_scc1 .LS_tk\ns_waitcnt lgkmcnt(0)\ns_branch .LS_go")
        A.label(".LS_tk")
        hu_wait(A, 1024, "s_mov_b32 s33, s38", wave=None)
    else:
        hu_wait(A, 1024, "s_mov_b32 s33, s38")
    if opts.get('d1s', 0): A(f"s_sleep {opts.get('d1s', 0)}")
    A("s_branch .LS_step")
    A.label(".LS_fin")
    A("s_waitcnt vmcnt(0)\ns_barrier\ns_mov_b32 s38, 64")
    A.publish(47, 38)
    A.stamp(3)
    A("s_branch .Lend")
```

```python
MB = 1 << 20
CH0 = 0
CH_STEP = 1 * MB
UT0 = 66 * MB
Q0 = 150 * MB
K0 = 174 * MB
V0 = 198 * MB
PT0 = 222 * MB
H1F0 = 228 * MB
YF0 = 231 * MB
X20 = 234 * MB
HH0 = 240 * MB
MODP0 = 247 * MB
FLG0 = 248 * MB
FS = 7
F_H1 = 0; F_Q = 256*32; F_K = 384*32; F_V = 512*32; F_U = 640*32; F_S = 768*32; F_Y = 896*32
F_B1 = 1024*32; F_LN = 1152*32; F_M1 = 1280*32; F_DET = 1408*32
FLG_BYTES = 65536
TS0 = 250 * MB
KA = dict(x=0, mem0=8, Wq=16, Wk=24, Wv=32, Wo=40, seg=48, Bx=56, w1=64, b1=72, w2=80, b2=88, c=96, wmod=104, out=112, dbg=120, ws=128)
PAIRS = [(0, 1), (3, 4), (6, 7), (9, 10), (2, 5), (8, 11)]
```

```python
import sys
from asmlib import *
from layout import *

GUARD = 400000
import struct
def f2h(x):
    return '0x%08x' % struct.unpack('<I', struct.pack('<f', x))[0]
GC1 = -2*1.4426950408889634*0.7978845608028654
GC2 = GC1*0.044715

class G(Asm):
    def guard(self):
        self(f"""
        s_add_u32 s14, s14, 1
        s_cmp_gt_u32 s14, {GUARD}
        s_cbranch_scc1 .Lend
        """)
    def base(self, sd, off, src=4):
        self(f"s_add_u32 s{sd}, s{src}, {off}\ns_addc_u32 s{sd+1}, s{src+1}, 0")
    def addbase(self, sd, x):
        self(f"s_add_u32 s{sd}, s{sd}, {x}\ns_addc_u32 s{sd+1}, s{sd+1}, 0")
    def wait_prog(self, foff, nwords, need_s, known_s, vt=2):
        lp = self.newlabel("wp"); done = self.newlabel("wpd")
        self(f"""
        s_cmp_ge_u32 s{known_s}, s{need_s}
        s_cbranch_scc1 {done}
        v_min_u32 v{vt}, {nwords-1}, v1
        v_lshlrev_b32 v{vt}, {FS}, v{vt}
        v_add_u32 v{vt}, {foff}, v{vt}
        """)
        self.label(lp)
        self(f"""
        global_load_dword v{vt+1}, v{vt}, s[10:11] sc1
        s_waitcnt vmcnt(0)
        """)
        if nwords > 1:
            for sh in (1, 2, 4, 8):
                if sh < nwords:
                    self(f"s_nop 1\nv_min_u32_dpp v{vt+1}, v{vt+1}, v{vt+1} row_ror:{sh} row_mask:0xf bank_mask:0xf")
        self(f"s_nop 1\nv_readlane_b32 s{known_s}, v{vt+1}, 0")
        if nwords > 16:
            self(f"v_readlane_b32 s15, v{vt+1}, 16\ns_nop 0\ns_min_u32 s{known_s}, s{known_s}, s15")
        if nwords > 32:
            self(f"v_readlane_b32 s15, v{vt+1}, 32\nv_readlane_b32 s16, v{vt+1}, 48\ns_nop 0\ns_min_u32 s{known_s}, s{known_s}, s15\ns_min_u32 s{known_s}, s{known_s}, s16")
        self(f"""
        s_cmp_ge_u32 s{known_s}, s{need_s}
        s_cbranch_scc1 {done}
        s_sleep {self.PSL}
        """)
        self.guard()
        self(f"s_branch {lp}")
        self.label(done)
    def publish(self, foff_s, val_s, vt=2):
        sk = self.newlabel("pub")
        self(f"""
        s_cmp_lg_u32 s12, 0
        s_cbranch_scc1 {sk}
        v_mov_b32 v{vt}, s{foff_s}
        v_mov_b32 v{vt+1}, s{val_s}
        s_mov_b64 exec, 1
        global_store_dword v{vt}, v{vt+1}, s[10:11] sc1
        s_mov_b64 exec, -1
        """)
        self.label(sk)
    TS = 0
    PSL = 2
    def stamp(self, slot, slot_s=None):
        if not self.TS: return
        sk = self.newlabel("ts")
        self(f"""
        s_cmp_lg_u32 s12, 0
        s_cbranch_scc1 {sk}
        s_memrealtime s[98:99]
        s_memtime s[100:101]
        s_lshl_b32 s97, s96, 8
        s_add_u32 s97, s97, {TS0 + slot*4}
        v_mov_b32 v2, s97
        s_waitcnt lgkmcnt(0)
        v_mov_b32 v3, s98
        s_mov_b64 exec, 1
        global_store_dword v2, v3, s[4:5]
        v_mov_b32 v3, s100
        global_store_dword v2, v3, s[4:5] offset:128
        v_mov_b32 v3, s14
        global_store_dword v2, v3, s[4:5] offset:64
        v_mov_b32 v3, s94
        global_store_dword v2, v3, s[4:5] offset:96
        s_mov_b64 exec, -1
        """)
        self.label(sk)
    def stamp_iter(self, sreg):
        if not self.TS: return
        for k, it in enumerate((2, 4, 8, 16, 32, 48)):
            sk = self.newlabel("si")
            self(f"s_cmp_lg_u32 s{sreg}, {it}\ns_cbranch_scc1 {sk}")
            self.stamp(4+k)
            self.label(sk)
    def red16(self, v, op="v_add_f32"):
        for sh in (8, 4, 2, 1):
            self(f"s_nop 1\n{op}_dpp v{v}, v{v}, v{v} row_ror:{sh} row_mask:0xf bank_mask:0xf")

def slice_addr(A, vc, vo, eb):
    t = vo + 2
    sh = {16: 4, 64: 6}[eb]
    A(f"""
    v_and_b32 v{t}, 15, v{vc}
    v_sub_u32 v{t+1}, v{vc}, v{t}
    v_lshlrev_b32 v{t}, {sh}, v{t}
    v_lshlrev_b32 v{t+1}, {sh+5}, v{t+1}
    v_add_u32 v{vo}, v{t}, v{t+1}
    v_mov_b32 v{vo+1}, {16*eb}
    """)

def gen_k0(A, fill_bytes, DETINV=0):
    kernel_begin(A, "prep_kernel")
    per = (fill_bytes + 256*4096 - 1)//(256*4096)
    A(f"""
    s_cmp_ge_u32 s2, 256
    s_cbranch_scc1 .Lk0_end
    s_load_dwordx4 s[4:7], s[0:1], {KA['c']}      ; c, wmod
    s_load_dwordx2 s[8:9], s[0:1], {KA['ws']}
    s_waitcnt lgkmcnt(0)
    s_cmp_ge_u32 s2, 240
    s_cbranch_scc1 .Lk0_fill
    ; cg = wg % 60, kq = wg / 60
    s_mul_i32 s10, s2, 1093
    s_lshr_b32 s10, s10, 16          ; kq
    s_mul_i32 s11, s10, 60
    s_sub_u32 s11, s2, s11           ; cg
    v_and_b32 v1, 7, v0              ; c8
    v_lshrrev_b32 v2, 3, v0          ; rg
    s_mul_i32 s12, s10, 160
    v_add_u32 v3, s12, v2            ; row0
    v_mul_u32_u24 v4, 7680, v3
    v_lshlrev_b32 v5, 4, v1
    v_add_u32 v4, v4, v5
    s_lshl_b32 s12, s11, 7
    v_add_u32 v4, s12, v4
    v_lshlrev_b32 v5, 1, v3          ; c offset
    """)
    for j in range(5):
        A(f"global_load_dwordx4 v[{16+4*j}:{19+4*j}], v4, s[6:7]")
        A(f"global_load_ushort v{40+j}, v5, s[4:5] offset:{64*j}")
        if j < 4: A(f"v_add_u32 v4, {32*7680}, v4")
    for i in range(8): A(f"v_mov_b32 v{48+i}, 0")
    A("s_waitcnt vmcnt(0)")
    for j in range(5):
        A(f"""
        v_lshlrev_b32 v{40+j}, 16, v{40+j}
        v_mul_f32 v6, {f2h(-1.4426950408889634)}, v{40+j}
        v_exp_f32 v6, v6
        s_nop 0
        v_add_f32 v6, 1.0, v6
        v_rcp_f32 v6, v6
        s_nop 0
        v_mul_f32 v6, v6, v{40+j}
        """)
        for q in range(4):
            r = 16+4*j+q
            A(f"""
            v_lshlrev_b32 v7, 16, v{r}
            v_and_b32 v8, 0xffff0000, v{r}
            v_fmac_f32 v{48+2*q}, v6, v7
            v_fmac_f32 v{49+2*q}, v6, v8
            """)
    A(f"""
    v_lshlrev_b32 v9, 5, v0
    ds_write_b128 v9, v[48:51]
    ds_write_b128 v9, v[52:55] offset:16
    s_waitcnt lgkmcnt(0)
    s_barrier
    v_and_b32 v1, 63, v0             ; col
    v_lshrrev_b32 v2, 6, v0
    v_lshlrev_b32 v3, 2, v1
    v_lshlrev_b32 v4, 11, v2
    v_add_u32 v3, v3, v4
    """)
    for i in range(8): A(f"ds_read_b32 v{16+i}, v3 offset:{256*i}")
    A("s_waitcnt lgkmcnt(0)")
    for i in range(1, 8): A(f"v_add_f32 v16, v16, v{16+i}")
    A(f"""
    v_lshlrev_b32 v3, 2, v0
    ds_write_b32 v3, v16 offset:8192
    s_waitcnt lgkmcnt(0)
    s_barrier
    v_cmp_gt_u32 vcc, 64, v0
    s_and_saveexec_b64 s[14:15], vcc
    s_cbranch_execz .Lk0_fill
    ds_read_b32 v16, v3 offset:8192
    ds_read_b32 v17, v3 offset:{8192+256}
    ds_read_b32 v18, v3 offset:{8192+512}
    ds_read_b32 v19, v3 offset:{8192+768}
    s_waitcnt lgkmcnt(0)
    v_add_f32 v16, v16, v17
    v_add_f32 v18, v18, v19
    v_add_f32 v16, v16, v18
    s_mul_i32 s12, s10, {3840*4}
    s_lshl_b32 s13, s11, 8
    s_add_u32 s12, s12, s13
    s_add_u32 s12, s12, {MODP0}
    v_add_u32 v3, s12, v3
    global_store_dword v3, v16, s[8:9]
    """)
    A.label(".Lk0_fill")
    A(f"""
    s_mov_b64 exec, -1
    v_mov_b32 v4, -1
    v_mov_b32 v5, -1
    v_mov_b32 v6, -1
    v_mov_b32 v7, -1
    s_mul_i32 s12, s2, {per*4096}
    v_lshlrev_b32 v1, 4, v0
    v_add_u32 v1, s12, v1
    s_mov_b32 s13, {per}
    """)
    A.label(".Lk0_fl")
    A(f"""
    global_store_dwordx4 v1, v[4:7], s[8:9]
    v_add_u32 v1, 4096, v1
    s_sub_u32 s13, s13, 1
    s_cmp_lg_u32 s13, 0
    s_cbranch_scc1 .Lk0_fl
    s_cmp_lg_u32 s2, 255
    s_cbranch_scc1 .Lk0_end
    v_mov_b32 v4, 0
    v_mov_b32 v5, 0
    v_lshlrev_b32 v1, 8, v0
    v_add_u32 v1, {FLG0}, v1
    global_store_dwordx2 v1, v[4:5], s[8:9] sc1
    global_store_dwordx2 v1, v[4:5], s[8:9] offset:128 sc1
    s_waitcnt vmcnt(0)
    s_barrier
    v_cmp_gt_u32 vcc, 16, v0
    s_and_saveexec_b64 s[14:15], vcc
    s_cbranch_execz .Lk0_end
    v_lshlrev_b32 v1, 13, v0
    v_add_u32 v1, {4*MB + 7680}, v1
    global_store_dword v1, v4, s[8:9] sc1
    s_mov_b64 exec, 1
    s_mov_b32 s20, 0x7fffffff
    s_mov_b32 s21, 0x7fffffff
    s_waitcnt vmcnt(0)
    """)
    for smp in range(16):
        A(f"""
        v_mov_b32 v1, {4*MB + 7680 + smp*8192}
        s_memtime s[22:23]
        s_waitcnt lgkmcnt(0)
        global_load_dword v2, v1, s[8:9] sc1
        s_waitcnt vmcnt(0)
        s_memtime s[24:25]
        s_waitcnt lgkmcnt(0)
        s_sub_u32 s24, s24, s22
        s_min_u32 s{20 + smp%2}, s{20 + smp%2}, s24
        """)
    A(f"""
    s_getreg_b32 s22, hwreg(HW_REG_XCC_ID)
    s_lshr_b32 s22, s22, 2
    s_and_b32 s22, s22, 1
    s_cmp_lt_u32 s21, s20
    s_cselect_b32 s23, 3, 2
    s_xor_b32 s23, s23, s22
    s_xor_b32 s23, s23, {DETINV}
    v_mov_b32 v1, {FLG0 + F_DET}
    v_mov_b32 v2, s23
    global_store_dword v1, v2, s[8:9] sc1
    """)
    A.label(".Lk0_end")
    A("s_endpgm")

def init_wait(A, vt=2, off=128):
    lp = A.newlabel("iw"); dn = A.newlabel("iwd")
    A(f"v_mov_b32 v{vt}, {off}")
    A.label(lp)
    A(f"global_load_dword v{vt+1}, v{vt}, s[6:7] sc0 sc1\ns_waitcnt vmcnt(0)\nv_readfirstlane_b32 s15, v{vt+1}\ns_nop 3\ns_cmp_ge_u32 s15, 64\ns_cbranch_scc1 {dn}\ns_sleep 4")
    A.guard()
    A(f"s_branch {lp}")
    A.label(dn)

def gen_detect(A, DETINV):
    sk = A.newlabel("dsk")
    A(f"""
    s_cmp_lg_u32 s2, 0
    s_cbranch_scc1 {sk}
    s_lshl_b32 s16, s12, 15
    s_add_u32 s16, s16, {4*MB + 7680}
    v_lshlrev_b32 v2, 13, v1
    v_add_u32 v2, s16, v2
    v_mov_b32 v3, 0
    s_mov_b64 exec, 15
    global_store_dword v2, v3, s[4:5] sc1
    s_mov_b64 exec, 1
    s_mov_b32 s20, 0x7fffffff
    s_mov_b32 s21, 0x7fffffff
    s_waitcnt vmcnt(0)
    """)
    for smp in range(4):
        A(f"""
        s_memtime s[22:23]
        s_waitcnt lgkmcnt(0)
        global_load_dword v3, v2, s[4:5] sc1
        s_waitcnt vmcnt(0)
        s_memtime s[24:25]
        v_add_u32 v2, 8192, v2
        s_waitcnt lgkmcnt(0)
        s_sub_u32 s24, s24, s22
        s_min_u32 s{20 + smp%2}, s{20 + smp%2}, s24
        """)
    A(f"""
    s_lshl_b32 s16, s12, 3
    v_mov_b32 v2, s16
    v_mov_b32 v4, s20
    v_mov_b32 v5, s21
    ds_write_b64 v2, v[4:5] offset:64
    s_mov_b64 exec, -1
    s_waitcnt lgkmcnt(0)
    s_barrier
    v_mov_b32 v2, 0
    ds_read_b128 v[4:7], v2 offset:64
    ds_read_b128 v[8:11], v2 offset:80
    s_waitcnt lgkmcnt(0)
    v_min3_u32 v4, v4, v6, v8
    v_min3_u32 v5, v5, v7, v9
    v_min_u32 v4, v4, v10
    v_min_u32 v5, v5, v11
    s_nop 0
    v_readfirstlane_b32 s20, v4
    v_readfirstlane_b32 s21, v5
    s_lshr_b32 s22, s15, 2
    s_nop 2
    s_cmp_lt_u32 s21, s20
    s_cselect_b32 s23, 3, 2
    s_xor_b32 s23, s23, s22
    s_xor_b32 s23, s23, {DETINV}
    v_mov_b32 v2, 144
    v_mov_b32 v3, s23
    s_mov_b64 exec, 1
    global_store_dword v2, v3, s[6:7] sc0 sc1
    s_mov_b64 exec, -1
    """)
    A.label(sk)

def gen_pool_init(A):
    A(f"""
    s_load_dwordx4 s[20:23], s[0:1], {KA['c']}      ; c, wmod
    s_load_dwordx2 s[18:19], s[0:1], {KA['x']}
    v_lshrrev_b32 v4, 4, v0          ; token 0..15
    s_lshl_b32 s15, s13, 5
    v_add_u32 v5, s15, v4
    v_mul_u32_u24 v5, 1280, v5
    v_and_b32 v6, 15, v1
    v_lshlrev_b32 v6, 4, v6
    v_add_u32 v5, v5, v6
    s_waitcnt lgkmcnt(0)
    """)
    for p in range(2):
        for j in range(5):
            A(f"global_load_dwordx4 v[{200+20*p+4*j}:{203+20*p+4*j}], v5, s[18:19] offset:{256*j}")
        if p == 0: A(f"v_add_u32 v5, {16*1280}, v5")
    A(f"""
    v_mov_b32 v4, -1
    v_mov_b32 v5, -1
    v_mov_b32 v6, -1
    v_mov_b32 v7, -1
    s_mul_i32 s15, s13, 12288
    v_lshlrev_b32 v2, 4, v0
    v_add_u32 v2, s15, v2
    v_add_u32 v3, {MB}, v2
    """)
    for i in range(3):
        A(f"global_store_dwordx4 v2, v[4:7], s[4:5] sc1\nglobal_store_dwordx4 v3, v[4:7], s[4:5] sc1")
        if i < 2: A("v_add_u32 v2, 4096, v2\nv_add_u32 v3, 4096, v3")
    A(f"""
    s_lshl_b32 s15, s13, 10
    v_lshlrev_b32 v2, 2, v0
    v_add_u32 v2, s15, v2
    v_mov_b32 v3, 0
    global_store_dword v2, v3, s[10:11] sc1
    """)
    A(f"""
    s_mul_i32 s16, s13, 3277
    s_lshr_b32 s16, s16, 16          ; kq
    s_mul_i32 s17, s16, 20
    s_sub_u32 s17, s13, s17          ; cg
    s_mul_i32 s24, s16, 224
    s_mul_i32 s25, s16, {1280*4}
    """)
    mod_part(A, "a", 60, 7)
    arrive(A, "a", 64, 128)
    init_wait(A)
    A.stamp(12)

def mod_part(A, tag, nwg, nit):
    A(f"""
    s_cmp_ge_u32 s13, {nwg}
    s_cbranch_scc1 .Lmp_done{tag}
    v_and_b32 v8, 7, v0              ; c8
    v_lshrrev_b32 v9, 3, v0          ; rg
    v_add_u32 v9, s24, v9
    v_lshlrev_b32 v8, 4, v8
    s_lshl_b32 s15, s17, 7
    v_add_u32 v8, s15, v8
    """)
    for j in range(nit):
        A(f"""
        v_min_u32 v4, 639, v9
        v_lshlrev_b32 v5, 1, v4
        v_mul_u32_u24 v4, 7680, v4
        v_add_u32 v4, v4, v8
        global_load_ushort v{140+j}, v5, s[20:21]
        global_load_dwordx4 v[{48+4*j}:{51+4*j}], v4, s[22:23]
        v_cmp_gt_u32 vcc, 640, v9
        v_add_u32 v9, 32, v9
        s_nop 0
        v_cndmask_b32 v{180+j}, 0, 1.0, vcc
        """)
    for i in range(8): A(f"v_mov_b32 v{32+i}, 0")
    for j in range(nit):
        A(f"""
        s_waitcnt vmcnt({2*(nit-1-j)})
        v_lshlrev_b32 v{140+j}, 16, v{140+j}
        v_mul_f32 v10, {f2h(-1.4426950408889634)}, v{140+j}
        v_exp_f32 v10, v10
        v_mul_f32 v{140+j}, v{140+j}, v{180+j}
        v_add_f32 v10, 1.0, v10
        v_rcp_f32 v10, v10
        s_nop 0
        v_mul_f32 v10, v10, v{140+j}
        """)
        for q in range(4):
            r = 48+4*j+q
            A(f"v_lshlrev_b32 v6, 16, v{r}\nv_and_b32 v7, 0xffff0000, v{r}\nv_fmac_f32 v{32+2*q}, v10, v6\nv_fmac_f32 v{33+2*q}, v10, v7")
    A(f"""
    v_lshlrev_b32 v9, 5, v0
    ds_write_b128 v9, v[32:35]
    ds_write_b128 v9, v[36:39] offset:16
    s_waitcnt lgkmcnt(0)
    s_barrier
    v_lshlrev_b32 v3, 2, v1
    s_lshl_b32 s15, s12, 11
    v_add_u32 v3, s15, v3
    """)
    for i in range(8): A(f"ds_read_b32 v{16+i}, v3 offset:{256*i}")
    A("s_waitcnt lgkmcnt(0)")
    for i in range(1, 8): A(f"v_add_f32 v16, v16, v{16+i}")
    A(f"""
    v_lshlrev_b32 v3, 2, v0
    ds_write_b32 v3, v16 offset:8192
    s_waitcnt lgkmcnt(0)
    s_barrier
    s_cmp_lg_u32 s12, 0
    s_cbranch_scc1 .Lmp_done{tag}
    ds_read_b32 v16, v3 offset:8192
    ds_read_b32 v17, v3 offset:{8192+256}
    ds_read_b32 v18, v3 offset:{8192+512}
    ds_read_b32 v19, v3 offset:{8192+768}
    s_waitcnt lgkmcnt(0)
    v_add_f32 v16, v16, v17
    v_add_f32 v18, v18, v19
    v_add_f32 v16, v16, v18
    s_lshl_b32 s15, s17, 8
    s_add_u32 s15, s15, s25
    s_add_u32 s15, s15, {MODP0}
    v_add_u32 v3, s15, v3
    global_store_dword v3, v16, s[4:5] sc1
    """)
    A.label(f".Lmp_done{tag}")

def arrive(A, tag, cnt_off, flag_off):
    A(f"""
    s_waitcnt vmcnt(0)
    s_barrier
    s_cmp_lg_u32 s12, 0
    s_cbranch_scc1 .Lar_w{tag}
    v_mov_b32 v2, {cnt_off}
    v_mov_b32 v3, 1
    s_mov_b64 exec, 1
    global_atomic_add v4, v2, v3, s[6:7] sc0 sc1
    s_waitcnt vmcnt(0)
    v_cmp_eq_u32 vcc, 63, v4
    v_mov_b32 v2, {flag_off}
    v_mov_b32 v3, 64
    s_and_b64 exec, exec, vcc
    s_cbranch_execz .Lar_x{tag}
    global_store_dword v2, v3, s[6:7] sc0 sc1
    """)
    A.label(f".Lar_x{tag}")
    A("s_mov_b64 exec, -1")
    A.label(f".Lar_w{tag}")

def gen_pool_init2(A):
    A(f"""
    s_barrier
    s_mov_b32 s26, s13
    s_sub_u32 s13, s13, 20
    s_add_u32 s17, s13, 20
    s_mov_b32 s24, 0
    s_mov_b32 s25, {2*1280*4}
    """)
    mod_part(A, "b", 40, 20)
    A("s_mov_b32 s13, s26")
    arrive(A, "b", 68, 160)

def mod_to_lds(A, first, count, ldsoff):
    if first: init_wait(A, 2, 160); first += 2*1280
    n4 = count // 4
    it = 0
    while it * 256 < n4:
        rem = n4 - it*256
        A(f"v_lshlrev_b32 v2, 4, v0")
        if it: A(f"v_add_u32 v2, {it*4096}, v2")
        A(f"v_add_u32 v3, {MODP0 + first*4}, v2")
        if rem < 256:
            A(f"v_cmp_gt_u32 vcc, {rem}, v0\ns_and_saveexec_b64 s[16:17], vcc")
            sk = A.newlabel("m2l")
            A(f"s_cbranch_execz {sk}")
        if first:
            A("global_load_dwordx4 v[4:7], v3, s[4:5] sc1\ns_waitcnt vmcnt(0)")
        else:
            for q in range(3):
                A(f"global_load_dwordx4 v[{4+4*q}:{7+4*q}], v3, s[4:5] sc1")
                if q < 2: A(f"v_add_u32 v3, {1280*4}, v3")
            A("s_waitcnt vmcnt(0)")
            for i in range(4): A(f"v_add_f32 v{4+i}, v{4+i}, v{8+i}\nv_add_f32 v{4+i}, v{4+i}, v{12+i}")
        A(f"v_add_u32 v2, {ldsoff}, v2\nds_write_b128 v2, v[4:7]")
        if rem < 256:
            A.label(sk)
            A("s_mov_b64 exec, -1")
        it += 1
    A("s_waitcnt lgkmcnt(0)\ns_barrier")

def gen_h1(A):
    A.comment("==== h1: LN(x)*(1+ca)+sa for segment s13")
    mod_to_lds(A, 0, 1280, 0)
    A(f"""
    v_and_b32 v2, 15, v1
    v_lshlrev_b32 v3, 5, v2
    """)
    for j in range(5):
        A(f"ds_read_b128 v[{64+8*j}:{67+8*j}], v3 offset:{512*j}")
        A(f"ds_read_b128 v[{68+8*j}:{71+8*j}], v3 offset:{512*j+16}")
        A(f"ds_read_b128 v[{104+8*j}:{107+8*j}], v3 offset:{2560+512*j}")
        A(f"ds_read_b128 v[{108+8*j}:{111+8*j}], v3 offset:{2560+512*j+16}")
    A(f"""
    v_lshrrev_b32 v4, 4, v1
    s_lshl_b32 s15, s12, 2
    v_add_u32 v4, s15, v4
    s_lshl_b32 s15, s13, 5
    v_add_u32 v5, s15, v4
    v_mul_u32_u24 v5, 1280, v5
    v_lshlrev_b32 v6, 4, v2
    v_add_u32 v5, v5, v6
    v_lshrrev_b32 v6, 2, v2
    v_lshlrev_b32 v6, 10, v6
    v_and_b32 v7, 3, v2
    v_lshlrev_b32 v7, 8, v7
    v_add_u32 v6, v6, v7
    v_lshlrev_b32 v7, 4, v4
    v_add_u32 v6, v6, v7
    s_mul_i32 s15, s13, 40960
    s_add_u32 s15, s15, {H1F0}
    v_add_u32 v6, s15, v6
    s_waitcnt lgkmcnt(0)
    """)
    for i in range(40): A(f"v_add_f32 v{104+i}, 1.0, v{104+i}")
    for p in range(2):
        src = 200+20*p
        for i in range(20):
            A(f"v_lshlrev_b32 v{16+2*i}, 16, v{src+i}\nv_and_b32 v{17+2*i}, 0xffff0000, v{src+i}")
        A("v_add_f32 v8, v16, v17")
        for i in range(2, 40): A(f"v_add_f32 v8, v8, v{16+i}")
        A.red16(8)
        A(f"v_mul_f32 v8, {f2h(1/640)}, v8")
        for i in range(40): A(f"v_sub_f32 v{16+i}, v{16+i}, v8")
        A("v_mul_f32 v9, v16, v16")
        for i in range(1, 40): A(f"v_fmac_f32 v9, v{16+i}, v{16+i}")
        A.red16(9)
        A(f"""
        v_mov_b32 v10, {f2h(1e-5)}
        v_fmac_f32 v10, {f2h(1/640)}, v9
        v_rsq_f32 v10, v10
        s_nop 0
        """)
        for i in range(40):
            A(f"v_mul_f32 v{16+i}, v{16+i}, v10\nv_fma_f32 v{16+i}, v{16+i}, v{104+i}, v{64+i}")
        for i in range(20):
            A(f"v_cvt_pk_bf16_f32 v{144+20*p+i}, v{16+2*i}, v{17+2*i}")
        for j in range(5):
            A(f"global_store_dwordx4 v6, v[{144+20*p+4*j}:{147+20*p+4*j}], s[4:5] sc1")
            A(f"v_add_u32 v6, 4096, v6")
    A(f"""
    s_waitcnt vmcnt(0)
    s_barrier
    s_lshl_b32 s15, s13, {FS}
    s_add_u32 s15, s15, {F_H1}
    s_mov_b32 s16, 1
    """)
    A.publish(15, 16)

def load_weights(A, wbase, RS, nrows, npanel, swz, frags, lds0=0, chunk_rows=128, nbuf=3, vt=2, hold=-1):
    nchunk = nrows // chunk_rows
    nblk = (chunk_rows // 8) * npanel
    assert nblk % 4 == 0
    per_wave = nblk // 4
    cbytes = nblk * 1024
    A(f"""
    v_lshrrev_b32 v{vt}, 3, v1           ; r
    v_mul_u32_u24 v{vt+1}, {RS}, v{vt}
    """)
    if swz == 'dense':
        A(f"""
        v_lshrrev_b32 v{vt+2}, 1, v{vt}
        v_lshrrev_b32 v{vt+3}, 2, v{vt}
        v_xor_b32 v{vt+2}, v{vt+2}, v{vt+3}
        v_and_b32 v{vt+2}, 1, v{vt+2}        ; f0
        """)
    else:
        A(f"""
        v_lshrrev_b32 v{vt+2}, 1, v{vt}
        v_and_b32 v{vt+2}, 3, v{vt+2}
        """)
    A(f"""
    v_lshlrev_b32 v{vt+2}, 1, v{vt+2}
    v_and_b32 v{vt+3}, 7, v1
    v_xor_b32 v{vt+2}, v{vt+2}, v{vt+3}
    v_xor_b32 v{vt+3}, {4 if swz == 'dense' else 0}, v{vt+2}
    v_lshlrev_b32 v{vt+2}, 4, v{vt+2}
    v_lshlrev_b32 v{vt+3}, 4, v{vt+3}
    v_add_u32 v{vt+2}, v{vt+2}, v{vt+1}
    v_add_u32 v{vt+3}, v{vt+3}, v{vt+1}
    """)
    rbw = chunk_rows // 8 // 4
    A(f"""
    s_mul_i32 s15, s12, {rbw*8*RS}
    s_add_u32 s{wbase}, s{wbase}, s15
    s_addc_u32 s{wbase+1}, s{wbase+1}, 0
    s_mul_i32 s17, s12, {rbw*npanel*1024}
    """)
    def issue(c):
        buf = lds0 + (c % nbuf) * cbytes
        for i in range(rbw):
            for p in range(npanel):
                A(f"s_add_u32 m0, s17, {buf + (i*npanel+p)*1024 - p*128}")
                A("s_nop 0")
                vsrc = vt+2 + (i & 1 if rbw % 2 == 0 else 0)
                assert rbw % 2 == 0 or swz != 'dense'
                A(f"global_load_lds_dwordx4 v{vsrc}, s[{wbase}:{wbase+1}] offset:{p*128}")
            A.addbase(wbase, 8*RS if i < rbw-1 else (chunk_rows - (rbw-1)*8)*RS)
    for c in range(min(nbuf-1, nchunk)):
        if c == hold: init_wait(A, 6)
        issue(c)
    for c in range(nchunk):
        inflight = min(nchunk, c + nbuf - 1) - (c+1)
        A(f"s_waitcnt vmcnt({inflight*per_wave})")
        A("s_barrier")
        if c + nbuf - 1 < nchunk: issue(c + nbuf - 1)
        frags(c, lds0 + (c % nbuf) * cbytes)
        A("s_waitcnt lgkmcnt(0)")
    A("s_barrier")

def tr_addr_dense(A, vd, npanel):
    A(f"""
    v_lshrrev_b32 v{vd+8}, 4, v1             ; g
    v_mul_u32_u24 v{vd+9}, {npanel*1024}, v{vd+8}
    v_bfe_u32 v{vd+10}, v1, 2, 2             ; r
    v_lshlrev_b32 v{vd+11}, 7, v{vd+10}
    v_add_u32 v{vd+9}, v{vd+9}, v{vd+11}
    v_and_b32 v{vd+11}, 3, v1
    v_lshlrev_b32 v{vd+11}, 3, v{vd+11}
    v_add_u32 v{vd+9}, v{vd+9}, v{vd+11}
    v_lshrrev_b32 v{vd+10}, 1, v{vd+10}      ; (r>>1)&1
    v_and_b32 v{vd+8}, 1, v{vd+8}
    v_lshlrev_b32 v{vd+8}, 1, v{vd+8}
    v_or_b32 v{vd+10}, v{vd+10}, v{vd+8}
    """)
    for pr in range(4):
        A(f"""
        v_xor_b32 v{vd+11}, {pr}, v{vd+10}
        v_lshlrev_b32 v{vd+11}, 5, v{vd+11}
        v_add_u32 v{vd+pr}, v{vd+9}, v{vd+11}
        """)

def gen_proj(A, tag, m1=False, opts={}):
    RS = 3072 if m1 else 12288
    VD = 8
    tr_addr_dense(A, VD, 3)
    for w in range(4):
        l = A.newlabel("pw")
        A(f"s_cmp_lg_u32 s12, {w}\ns_cbranch_scc1 {l}")
        for j in range(3):
            T = 3*w + j
            A(f"v_add_u32 v{20+2*j}, {(T>>2)*1024}, v{VD+(T&3)}")
            A(f"v_add_u32 v{21+2*j}, {(T>>2)*1024 + 512}, v{VD+((T&3)^1)}")
        A.label(l)
    def frags(c, buf):
        for k4 in range(4):
            ks = 4*c + k4
            for j in range(3):
                d = (ks*3 + j)*4
                off = buf + k4*4*3*1024
                assert off < 65536 or True
                A(f"ds_read_b64_tr_b16 a[{d}:{d+1}], v{26+2*j} offset:{k4*12288}")
                A(f"ds_read_b64_tr_b16 a[{d+2}:{d+3}], v{27+2*j} offset:{k4*12288}")
    def frags_w(c, buf):
        for j in range(6): A(f"v_add_u32 v{26+j}, {buf}, v{20+j}")
        frags(c, buf)
    load_weights(A, 20, RS, 640, 3, 'dense', frags_w, hold=-1 if m1 else opts.get('holdA', -1))
    A.stamp(1)
    if m1:
        A(f"""
        s_load_dwordx2 s[28:29], s[0:1], {KA['b1']}
        v_lshrrev_b32 v2, 4, v1
        v_lshlrev_b32 v2, 3, v2            ; g*4*2 bytes
        s_mul_i32 s15, s13, 384
        s_mul_i32 s16, s12, 96
        s_add_u32 s15, s15, s16
        v_add_u32 v2, s15, v2
        s_waitcnt lgkmcnt(0)
        """)
        for j in range(3):
            A(f"global_load_dwordx2 v[{52+2*j}:{53+2*j}], v2, s[28:29] offset:{32*j}")
        A("s_waitcnt vmcnt(0)")
        for j in range(3):
            for q in range(2):
                A(f"v_lshlrev_b32 v{40+4*j+2*q}, 16, v{52+2*j+q}\nv_and_b32 v{41+4*j+2*q}, 0xffff0000, v{52+2*j+q}")
    A(f"""
    v_lshlrev_b32 v4, 4, v1
    s_mul_i32 s15, s12, 10240
    v_add_u32 v5, s15, v4
    s_lshl_b32 s15, s12, 10
    v_add_u32 v6, s15, v4
    v_lshlrev_b32 v7, 3, v1
    s_lshl_b32 s15, s12, 9
    s_add_u32 s15, s15, 4096
    v_add_u32 v7, s15, v7
    v_add_u32 v32, 40960, v4
    s_mul_i32 s30, s12, 10240
    s_mov_b32 s31, 0
    s_mov_b32 s32, 0
    """)
    def dma1(buf, i):
        if i % 4 == 0:
            A(f"s_add_u32 m0, s30, {buf + (i//4)*4096}")
            if i: A(f"v_add_u32 v5, 4096, v5")
            else: A("s_nop 0")
        A(f"global_load_lds_dwordx4 v5, s[22:23] offset:{(i%4)*1024} sc1")
        if i == 9: A(f"v_subrev_u32 v5, 8192, v5")
    def dma(buf):
        for i in range(10): dma1(buf, i)
    def compute(buf, dmabuf=None):
        NB = 4
        def rd(ks):
            for tt in range(2):
                r = 128 + ((ks % NB)*2 + tt)*4
                A(f"ds_read_b128 v[{r}:{r+3}], v{4 if buf == 0 else 32} offset:{tt*20480 + ks*1024}")
        for ks in range(NB-1): rd(ks)
        for ks in range(20):
            if ks + NB - 1 < 20:
                rd(ks + NB - 1)
                A(f"s_waitcnt lgkmcnt({2*(NB-1)})")
            else:
                A(f"s_waitcnt lgkmcnt({2*(19-ks)})")
            for tt in range(2):
                r = 128 + ((ks % NB)*2 + tt)*4
                for j in range(3):
                    acc = 64 + (tt*3 + j)*4
                    wv = (ks*3 + j)*4
                    c = "0" if ks == 0 else f"v[{acc}:{acc+3}]"
                    A(f"v_mfma_f32_16x16x32_bf16 v[{acc}:{acc+3}], a[{wv}:{wv+3}], v[{r}:{r+3}], {c}")
                if dmabuf is not None and tt == 0 and ks < 10:
                    dma1(dmabuf, ks)
    def epilogue():
        A("s_nop 7")
        for tt in range(2):
            for j in range(3):
                acc = 64 + (tt*3 + j)*4
                if m1:
                    for r in range(4):
                        x = acc + r
                        A(f"""
                        v_add_f32 v{x}, v{x}, v{40+4*j+r}
                        v_mul_f32 v2, v{x}, v{x}
                        v_mov_b32 v3, {f2h(GC1)}
                        v_fmac_f32 v3, {f2h(GC2)}, v2
                        v_mul_f32 v3, v3, v{x}
                        v_exp_f32 v3, v3
                        s_nop 0
                        v_add_f32 v3, 1.0, v3
                        v_rcp_f32 v3, v3
                        s_nop 0
                        v_mul_f32 v{x}, v{x}, v3
                        """)
                o = 96 + tt*8 + 2*j
                A(f"v_cvt_pk_bf16_f32 v{o}, v{acc}, v{acc+1}")
                A(f"v_cvt_pk_bf16_f32 v{o+1}, v{acc+2}, v{acc+3}")
            A(f"global_store_dwordx4 v6, v[{96+tt*8}:{99+tt*8}], s[24:25] offset:{0} sc1" if tt == 0 else
              f"global_store_dwordx4 v6, v[{96+tt*8}:{99+tt*8}], s[34:35] sc1")
            A(f"global_store_dwordx2 v7, v[{100+tt*8}:{101+tt*8}], s[24:25] sc1" if tt == 0 else
              f"global_store_dwordx2 v7, v[{100+tt*8}:{101+tt*8}], s[34:35] sc1")
    if not m1:
        init_wait(A)
        A("s_mov_b32 s33, 1")
        A.wait_prog(F_H1, 64, 33, 32)
        dma(0)
        A.addbase(22, 40960)
        A("s_waitcnt vmcnt(0)")
        A.stamp(2)
        A("s_waitcnt vmcnt(0)")
        top = f".Lproj_{tag}"
        A.label(top)
        A.stamp_iter(31)
        for par in range(2):
            eg = A.newlabel("eg")
            A(f"s_sub_u32 s33, s31, 1\ns_cmp_gt_u32 s31, 3\ns_cbranch_scc1 {eg}\ns_waitcnt vmcnt(0)\ns_mov_b32 s33, s31")
            A.label(eg)
            A("s_waitcnt vmcnt(4)\ns_barrier")
            A.publish(26, 33)
            dm = opts.get('dm', 1)
            if dm == 0:
                dma(40960 * (1 - par))
                compute(40960 * par)
            elif dm == 1:
                compute(40960 * par, 40960 * (1 - par))
            else:
                compute(40960 * par)
            A.addbase(22, 40960)
            A.base(34, 6144, 24)
            epilogue()
            A(f"s_add_u32 s24, s24, s27\ns_addc_u32 s25, s25, 0\ns_add_u32 s31, s31, 1")
        A(f"""
        s_cmp_lt_u32 s31, 64
        s_cbranch_scc1 {top}
        s_waitcnt vmcnt(0)
        s_barrier
        """)
        A.publish(26, 31)
        A.stamp(3)
    else:
        def flagaddr(seg_s):
            A(f"""
            s_and_b32 s15, s{seg_s}, 1
            s_lshl_b32 s15, s15, {FS+1}
            s_add_u32 s15, s15, {F_LN}
            v_add_u32 v33, s15, v34
            s_lshr_b32 s33, s{seg_s}, 1
            s_add_u32 s33, s33, 1
            """)
        def pubw():
            A("v_mov_b32 v36, s31\ns_mov_b64 exec, 1\nglobal_store_dword v35, v36, s[10:11] sc1\ns_mov_b64 exec, -1")
        A(f"""
        v_and_b32 v34, 1, v1
        v_lshlrev_b32 v34, {FS}, v34
        s_lshl_b32 s15, s12, {FS}
        s_add_u32 s15, s15, s26
        v_mov_b32 v35, s15
        v_mov_b32 v37, {f2h(GC1)}
        s_mov_b32 s36, 0
        """)
        def gelu(tt):
            o = []
            for j in range(3):
                acc = 64 + (tt*3 + j)*4
                t = 112 + 4*j
                o += [f"v_add_f32 v{acc+r}, v{acc+r}, v{40+4*j+r}" for r in range(4)]
                o += [f"v_mul_f32 v{t+r}, v{acc+r}, v{acc+r}" for r in range(4)]
                o += [f"v_fma_f32 v{t+r}, v{t+r}, v38, v37" for r in range(4)]
                o += [f"v_mul_f32 v{t+r}, v{t+r}, v{acc+r}" for r in range(4)]
                o += [f"v_exp_f32 v{t+r}, v{t+r}" for r in range(4)]
                o += [f"v_add_f32 v{t+r}, 1.0, v{t+r}" for r in range(4)]
                o += [f"v_rcp_f32 v{t+r}, v{t+r}" for r in range(4)]
                o += [f"v_mul_f32 v{acc+r}, v{acc+r}, v{t+r}" for r in range(4)]
                d = 96 + tt*8 + 2*j
                o += [f"v_cvt_pk_bf16_f32 v{d}, v{acc}, v{acc+1}", f"v_cvt_pk_bf16_f32 v{d+1}, v{acc+2}, v{acc+3}"]
            bs = "s[24:25]" if tt == 0 else "s[34:35]"
            o += [f"global_store_dwordx4 v6, v[{96+tt*8}:{99+tt*8}], {bs} sc1", f"global_store_dwordx2 v7, v[{100+tt*8}:{101+tt*8}], {bs} sc1"]
            return o
        A(f"v_mov_b32 v38, {f2h(GC2)}")
        A.label(".Lm1_top")
        for par in range(2):
            buf = 40960*par
            have = A.newlabel("m1h"); lp = A.newlabel("m1w"); go = A.newlabel("m1g"); j2 = A.newlabel("m1j")
            A(f"s_waitcnt vmcnt(0)")
            pubw()
            A(f"s_cmp_eq_u32 s36, 1\ns_cbranch_scc1 {have}")
            flagaddr(31)
            A.label(lp)
            A(f"global_load_dword v3, v33, s[10:11] sc1\ns_waitcnt vmcnt(0)\nv_cmp_gt_u32 vcc, s33, v3\ns_cbranch_vccz {go}\ns_sleep {A.PSL}")
            A.guard()
            A(f"s_branch {lp}")
            A.label(go)
            dma(buf)
            A.addbase(22, 40960)
            A("s_waitcnt vmcnt(0)")
            A.label(have)
            A("s_barrier\ns_add_u32 s37, s31, 1")
            flagaddr(37)
            A("global_load_dword v39, v33, s[10:11] sc1")
            A.base(34, 6144, 24)
            NB = 8
            seq = [(tt, ks) for tt in range(2) for ks in range(20)]
            def rd(n):
                tt, ks = seq[n]; r = 128 + (n % NB)*4
                A(f"ds_read_b128 v[{r}:{r+3}], v{4 if par == 0 else 32} offset:{tt*20480 + ks*1024}")
            for n in range(NB-1): rd(n)
            side = []
            for n, (tt, ks) in enumerate(seq):
                if n + NB - 1 < 40: rd(n + NB - 1); A(f"s_waitcnt lgkmcnt({NB-1})")
                else: A(f"s_waitcnt lgkmcnt({39-n})")
                r = 128 + (n % NB)*4
                if n == 23: side = gelu(0)
                for j in range(3):
                    acc = 64 + (tt*3 + j)*4
                    wv = (ks*3 + j)*4
                    c = "0" if ks == 0 else f"v[{acc}:{acc+3}]"
                    A(f"v_mfma_f32_16x16x32_bf16 v[{acc}:{acc+3}], a[{wv}:{wv+3}], v[{r}:{r+3}], {c}")
                    for _ in range(2):
                        if side: A(side.pop(0))
                if n == 9:
                    A("s_waitcnt vmcnt(0)\nv_cmp_gt_u32 vcc, s33, v39\ns_cmp_eq_u64 vcc, 0\ns_cselect_b32 s36, 1, 0\ns_cmp_ge_u32 s31, 63\ns_cselect_b32 s36, 0, s36")
                if 10 <= n < 20:
                    sk = A.newlabel("m1s")
                    A(f"s_cmp_eq_u32 s36, 0\ns_cbranch_scc1 {sk}")
                    dma1(40960*(1-par), n-10)
                    if n == 19: A.addbase(22, 40960)
                    A.label(sk)
            while side: A(side.pop(0))
            A("s_nop 7")
            A("\n".join(gelu(1)))
            A(f"s_add_u32 s24, s24, s27\ns_addc_u32 s25, s25, 0\ns_add_u32 s31, s31, 1")
        A("s_cmp_lt_u32 s31, 64\ns_cbranch_scc1 .Lm1_top\ns_waitcnt vmcnt(0)")
        pubw()
        A.stamp(3)
    A("s_branch .Lend")

ROLE_BITS = dict(h1=1, qkv=2, u=4, chain=8, b1=16, ln=32, m1=64, m2=128)

def gen_all(phases, fill_bytes=2*MB, opts=None):
    opts = opts or {}
    import chain
    chain.NC = opts.get('nc', 20)
    A = G()
    A.TS = opts.get('ts', 0)
    A.PSL = opts.get('psl', 2)
    assert len(phases) == 1
    labels = []
    for i, m in enumerate(phases):
        lab = f"mega{i}_kernel" if len(phases) > 1 else NAME + "_kernel"
        labels.append(lab)
        kernel_begin(A, lab)
        A(f"s_mov_b32 s3, {m}")
        A("s_branch .Lmega")
    A.raw(".p2align 8")
    A.label(".Lmega")
    A(f"""
    s_cmp_ge_u32 s2, 256
    s_cbranch_scc1 .Lend
    s_load_dwordx2 s[4:5], s[0:1], {KA['ws']}
    s_load_dwordx4 s[8:11], s[0:1], {KA['out']}
    v_lshrrev_b32 v2, 6, v0
    v_and_b32 v1, 63, v0
    s_mov_b32 s14, 0
    s_mov_b32 s94, 0
    v_readfirstlane_b32 s12, v2
    s_getreg_b32 s15, hwreg(HW_REG_XCC_ID)
    s_and_b32 s15, s15, 7
    s_waitcnt lgkmcnt(0)
    s_mov_b32 s6, s10
    s_mov_b32 s7, s11
    s_add_u32 s10, s4, {FLG0}
    s_addc_u32 s11, s5, 0
    """)
    gen_detect(A, opts.get('detinv', 0))
    A(f"""
    s_cmp_lg_u32 s12, 0
    s_cbranch_scc1 .Ltk_wait
    s_lshl_b32 s16, s15, 2
    v_mov_b32 v2, s16
    v_mov_b32 v3, 1
    s_mov_b64 exec, 1
    global_atomic_add v4, v2, v3, s[6:7] sc0 sc1
    s_waitcnt vmcnt(0)
    s_mov_b64 exec, -1
    v_readfirstlane_b32 s13, v4
    s_nop 3
    s_cmp_lt_u32 s13, 32
    s_cbranch_scc1 .Ltk_ok
    v_and_b32 v2, 7, v1
    v_lshlrev_b32 v2, 2, v2
    """)
    A.label(".Ltk_ov")
    A("global_load_dword v4, v2, s[6:7] sc0 sc1\ns_waitcnt vmcnt(0)\ns_mov_b32 s16, 0")
    for x in range(8): A(f"v_readlane_b32 s{20+x}, v4, {x}\ns_nop 3\ns_add_u32 s16, s16, s{20+x}")
    A.guard()
    A(f"""
    s_cmp_lt_u32 s16, 256
    s_cbranch_scc1 .Ltk_ov
    v_mov_b32 v2, 32
    s_mov_b64 exec, 1
    global_atomic_add v4, v2, v3, s[6:7] sc0 sc1
    s_waitcnt vmcnt(0)
    s_mov_b64 exec, -1
    v_readfirstlane_b32 s16, v4
    s_nop 3
    """)
    for x in range(8):
        A(f"""
        s_min_u32 s17, s{20+x}, 32
        s_mov_b32 s15, {x}
        s_add_u32 s13, s17, s16
        s_cmp_lt_u32 s13, 32
        s_cbranch_scc1 .Ltk_ok
        s_sub_u32 s16, s13, 32
        """)
    A("s_branch .Lend")
    A.label(".Ltk_ok")
    A(f"""
    s_lshl_b32 s16, s15, 8
    s_or_b32 s16, s16, s13
    v_mov_b32 v2, 0
    v_mov_b32 v3, s16
    ds_write_b32 v2, v3
    s_waitcnt lgkmcnt(0)
    """)
    A.label(".Ltk_wait")
    A(f"""
    s_barrier
    v_mov_b32 v2, 0
    ds_read_b32 v3, v2
    s_waitcnt lgkmcnt(0)
    v_readfirstlane_b32 s16, v3
    s_barrier
    s_lshr_b32 s15, s16, 8
    s_and_b32 s15, s15, 7
    s_and_b32 s13, s16, 31
    """)
    if opts.get('place', 2) == 2:
        A(f"""
        s_cmp_ge_u32 s15, 3
        s_cbranch_scc1 .Lpl_o
        s_cmp_ge_u32 s13, 28
        s_cbranch_scc1 .Lpl_q
        s_mul_i32 s16, s15, 28
        s_add_u32 s16, s16, s13            ; c 0..83
        s_mul_i32 s17, s16, 3121
        s_lshr_b32 s17, s17, 16            ; c/21
        s_mul_i32 s15, s17, 21
        s_sub_u32 s16, s16, s15            ; c%21
        s_cmp_lt_u32 s16, 5
        s_cbranch_scc1 .Lpl_c
        s_lshl_b32 s13, s17, 4
        s_add_u32 s13, s13, s16
        s_sub_u32 s13, s13, 5
        s_mov_b32 s96, s13
        """)
        A.stamp(0)
        A(f"""
        s_bitcmp1_b32 s3, 3
        s_cbranch_scc0 .Lend
        s_bitcmp1_b32 s13, 0
        s_cbranch_scc1 .Lrole_V
        s_branch .Lrole_S
        """)
        A.label(".Lpl_c")
        A("s_mul_i32 s13, s17, 5\ns_add_u32 s13, s13, s16\ns_branch .Lpl_b")
        A.label(".Lpl_q")
        A("s_lshl_b32 s16, s15, 2\ns_add_u32 s13, s13, s16\ns_sub_u32 s13, s13, 28\ns_mov_b32 s15, 0\ns_branch .Lrole_A")
        A.label(".Lpl_o")
        A(f"""
        s_mul_i32 s13, s13, 5
        s_add_u32 s13, s13, s15
        s_sub_u32 s13, s13, 3              ; o2 0..159
        s_cmp_ge_u32 s13, 44
        s_cbranch_scc1 .Lpl_a
        s_add_u32 s13, s13, 20
        s_branch .Lpl_b
        """)
        A.label(".Lpl_a")
        A(f"""
        s_sub_u32 s13, s13, 44
        s_lshr_b32 s16, s13, 5
        s_sub_u32 s15, 3, s16              ; type: 3 U, 2 V, 1 K, 0 Q
        s_and_b32 s13, s13, 31
        s_cmp_eq_u32 s15, 0
        s_cselect_b32 s16, 12, 0
        s_add_u32 s13, s13, s16
        s_branch .Lrole_A
        """)
        A.label(".Lpl_b")
        A("s_add_u32 s96, s13, 64")
        A.stamp(0)
    A.label(".Lrole_B")
    gen_pool_init(A)
    gen_h1(A)
    A.stamp(13)
    gen_pool_init2(A)
    A.label(".LB_after_h1")
    import stageb
    stageb.gen_stageB(A, opts)
    A("s_branch .Lend")
    A.label(".Lrole_A")
    A("s_lshl_b32 s96, s15, 5\ns_add_u32 s96, s96, s13\ns_add_u32 s96, s96, 128")
    A.stamp(0)
    A(f"""
    s_cmp_eq_u32 s15, 3
    s_cbranch_scc1 .Lrole_U
    s_bitcmp1_b32 s3, 1
    s_cbranch_scc0 .Lend
    s_lshl_b32 s16, s15, 3
    s_add_u32 s16, s16, {KA['Wq']}
    s_load_dwordx2 s[20:21], s[0:1], s16
    s_mul_i32 s16, s15, {24*MB}
    s_add_u32 s16, s16, {Q0}
    s_mul_i32 s17, s13, 12288
    s_add_u32 s16, s16, s17
    s_add_u32 s24, s4, s16
    s_addc_u32 s25, s5, 0
    s_mov_b32 s27, {32*12288}
    s_add_u32 s22, s4, {H1F0}
    s_addc_u32 s23, s5, 0
    s_lshl_b32 s26, s15, {FS+5}
    s_lshl_b32 s16, s13, {FS}
    s_add_u32 s26, s26, s16
    s_add_u32 s26, s26, {F_Q}
    s_mul_i32 s16, s13, 384
    s_waitcnt lgkmcnt(0)
    s_add_u32 s20, s20, s16
    s_addc_u32 s21, s21, 0
    """)
    gen_proj(A, "qkv", opts=opts)
    A.label(".Lrole_U")
    A("s_bitcmp1_b32 s3, 2\ns_cbranch_scc0 .Lend")
    gen_u(A, opts)
    import chain
    A.label(".Lrole_S")
    chain.gen_S(A, opts)
    A.label(".Lrole_V")
    chain.gen_V(A, opts)
    A.label(".Lrole_C")
    chain.gen_C(A, opts)
    A.label(".Lend")
    A("s_endpgm")
    launches = [(l, 256, 256, 163840) for l in labels]
    descs = [kdesc(l, 512, 102, 256) for l in labels]
    if opts.get('refill', 0):
        kernel_begin(A, "fill_kernel")
        A(f"""
        s_cmp_ge_u32 s2, 1024
        s_cbranch_scc1 .Lf_end
        s_load_dwordx2 s[8:9], s[0:1], {KA['ws']}
        v_mov_b32 v4, -1
        v_mov_b32 v5, -1
        v_mov_b32 v6, -1
        v_mov_b32 v7, -1
        s_lshl_b32 s12, s2, 16
        v_lshlrev_b32 v1, 4, v0
        v_add_u32 v1, s12, v1
        s_waitcnt lgkmcnt(0)
        """)
        for i in range(16): A("global_store_dwordx4 v1, v[4:7], s[8:9] sc1\nv_add_u32 v1, 4096, v1")
        A.label(".Lf_end")
        A("s_endpgm")
        launches.insert(len(launches)-1, ("fill_kernel", 1024, 256, 0))
        descs.append(kdesc("fill_kernel", 16, 32, 16))
    return assemble_file(launches, A.text(), descs)


def gen_u(A, opts):
    A.comment("==== U role: UT = V Wo_h, head s13")
    A(f"""
    s_load_dwordx2 s[20:21], s[0:1], {KA['Wo']}
    s_mul_i32 s16, s13, {192*1280}
    s_mul_i32 s17, s13, 12288
    s_add_u32 s17, s17, {V0}
    s_add_u32 s22, s4, s17
    s_addc_u32 s23, s5, 0
    s_mov_b32 s17, {UT0}
    s_add_u32 s24, s4, s17
    s_addc_u32 s25, s5, 0
    s_lshl_b32 s26, s13, {FS}
    s_add_u32 s26, s26, {F_U}
    s_waitcnt lgkmcnt(0)
    s_add_u32 s20, s20, s16
    s_addc_u32 s21, s21, 0
    v_lshrrev_b32 v12, 5, v1             ; g>>1
    v_mul_u32_u24 v13, 10240, v12
    v_bfe_u32 v12, v1, 2, 3              ; r = 4(g&1)+(i>>2)
    v_lshlrev_b32 v14, 7, v12
    v_add_u32 v13, v13, v14
    v_and_b32 v14, 3, v1
    v_lshlrev_b32 v14, 3, v14
    v_add_u32 v13, v13, v14
    v_lshrrev_b32 v12, 1, v12            ; f
    """)
    for pr in range(4):
        A(f"v_xor_b32 v14, {pr}, v12\nv_lshlrev_b32 v14, 5, v14\nv_add_u32 v{8+pr}, v13, v14")
    for w in range(4):
        l = A.newlabel("uw")
        A(f"s_cmp_lg_u32 s12, {w}\ns_cbranch_scc1 {l}")
        for j in range(10):
            NT = 10*w + j
            A(f"v_add_u32 v{20+j}, {(NT>>2)*1024}, v{8+(NT&3)}")
        A.label(l)
    def frags(cc, buf):
        for j in range(10): A(f"v_add_u32 v{30+j}, {buf}, v{20+j}")
        for tl in range(2):
            T = 2*cc + tl
            c, half = [(c, h) for c in range(6) for h in range(2) if PAIRS[c][h] == T][0]
            for j in range(10):
                d = (c*10 + j)*4 + half*2
                A(f"ds_read_b64_tr_b16 a[{d}:{d+1}], v{30+j} offset:{tl*20480}")
    load_weights(A, 20, 1280, 192, 10, 'wo', frags, chunk_rows=32, hold=opts.get('holdA', -1))
    A.stamp(1)
    A(f"""
    v_lshlrev_b32 v4, 4, v1
    v_lshlrev_b32 v6, 3, v1
    s_mul_i32 s30, s12, 3072
    v_add_u32 v5, s30, v4
    """)
    for j in range(10):
        A(f"s_mul_i32 s15, s12, 160\nv_and_b32 v3, 15, v1\nv_add_u32 v3, s15, v3\nv_add_u32 v3, {16*j}, v3")
        slice_addr(A, 3, 8, 64)
        A(f"v_mul_lo_u32 v9, v9, s13\nv_add_u32 v8, v8, v9\nv_lshrrev_b32 v9, 4, v1\nv_lshlrev_b32 v9, 4, v9\nv_add_u32 v{20+j}, v8, v9")
    A(f"""
    s_mov_b32 s31, 0
    s_mov_b32 s32, 0
    s_lshl_b32 s36, s13, {FS}
    s_add_u32 s36, s36, {F_V}
    s_add_u32 s36, s10, s36
    s_addc_u32 s37, s11, 0              ; unused
    """)
    def waitV():
        lp = A.newlabel("wv"); done = A.newlabel("wvd")
        A(f"s_cmp_ge_u32 s32, s33\ns_cbranch_scc1 {done}\nv_mov_b32 v2, 0")
        A.label(lp)
        A(f"""
        global_load_dword v3, v2, s[36:37] sc1
        s_waitcnt vmcnt(0)
        v_readfirstlane_b32 s32, v3
        s_nop 3
        s_cmp_ge_u32 s32, s33
        s_cbranch_scc1 {done}
        s_sleep 2
        """)
        A.guard()
        A(f"s_branch {lp}")
        A.label(done)
    def dma(buf):
        A(f"s_add_u32 m0, s30, {buf}\ns_nop 0")
        for i in range(3):
            A(f"global_load_lds_dwordx4 v5, s[22:23] offset:{i*1024} sc1")
        A.addbase(22, 32*12288)
    import chain
    chain.det_wait(A)
    for i in range(3):
        A(f"""
        s_mul_i32 s15, s12, 3
        s_add_u32 s15, s15, {i}
        s_min_u32 s15, s15, 10
        s_lshl_b32 s15, s15, 10
        s_mul_i32 s16, s13, 11264
        s_add_u32 s15, s15, s16
        v_add_u32 v{40+i}, s15, v4
        """)
        chain.l2p(A, 40+i, 2)
    for i in range(4): A(f"v_mov_b32 v{44+i}, -1")
    A(f"s_add_u32 s34, s34, {2*MB}\ns_addc_u32 s35, s35, 0\ns_xor_b32 s34, s34, 8192")
    A("s_mov_b32 s33, 1")
    waitV()
    dma(0)
    A("s_waitcnt vmcnt(0)")
    A.stamp(2)
    A("s_waitcnt vmcnt(0)")
    A.label(".Lu_top")
    A.stamp_iter(31)
    for par in range(2):
        buf = par*12288
        eg = A.newlabel("eg")
        A(f"s_sub_u32 s33, s31, 1\ns_cmp_gt_u32 s31, 3\ns_cbranch_scc1 {eg}\ns_waitcnt vmcnt(0)\ns_mov_b32 s33, s31")
        A.label(eg)
        A("s_waitcnt vmcnt(8)\ns_barrier")
        A.publish(26, 33)
        for tt in range(2):
            for c in range(4):
                r = 64 + (tt*6 + c)*4
                A(f"ds_read_b128 v[{r}:{r+3}], v4 offset:{buf + tt*6144 + c*1024}")
            for k in range(2):
                r = 64 + (tt*6 + 4 + k)*4
                o = (buf + tt*6144 + 4096)//512 + 2*k
                A(f"ds_read2st64_b64 v[{r}:{r+3}], v6 offset0:{o} offset1:{o+1}")
        A("s_waitcnt lgkmcnt(0)")
        def epi(j):
            acc = 112 + (j % 4)*8
            o = 144 + (j % 4)*4
            for q in range(4):
                A(f"v_cvt_pk_bf16_f32 v{o+q}, v{acc+2*q}, v{acc+2*q+1}")
            A(f"global_store_dwordx4 v{20+j}, v[{o}:{o+3}], s[24:25] sc1")
        for j in range(10):
            acc = 112 + (j % 4)*8
            n = 0
            if j == 5:
                sk = A.newlabel("und")
                A(f"s_cmp_ge_u32 s31, 63\ns_cbranch_scc1 {sk}\ns_add_u32 s33, s31, 2")
                waitV()
                dma(12288*(1-par))
                A.label(sk)
            for c in range(6):
                for tt in range(2):
                    r = 64 + (tt*6 + c)*4
                    wv = (c*10 + j)*4
                    a = acc + tt*4
                    cs = "0" if c == 0 else f"v[{a}:{a+3}]"
                    A(f"v_mfma_f32_16x16x32_bf16 v[{a}:{a+3}], v[{r}:{r+3}], a[{wv}:{wv+3}], {cs}")
                    n += 1
                    if n == 8 and j > 0: epi(j-1)
                    if n == 3 and j in (2, 5, 8): A(f"global_store_dwordx4 v{40 + j//3}, v[44:47], s[34:35] sc1")
        A("s_nop 7")
        epi(9)
        A(f"s_add_u32 s24, s24, {32*40960}\ns_addc_u32 s25, s25, 0\ns_add_u32 s31, s31, 1")
        A(f"s_add_u32 s34, s34, {MB}\ns_addc_u32 s35, s35, 0")
        if par == 1: A("s_xor_b32 s34, s34, 8192")
    A(f"""
    s_cmp_lt_u32 s31, 64
    s_cbranch_scc1 .Lu_top
    s_waitcnt vmcnt(0)
    s_barrier
    """)
    A.publish(26, 31)
    A.stamp(3)
    A("s_branch .Lend")

def main():
    out = sys.argv[1]
    phases = [int(x) for x in sys.argv[2].split(",")]
    opts = {}
    for a in sys.argv[3:]:
        k, v = a.split("="); opts[k] = int(v)
    open(out, "w").write(gen_all(phases, opts=opts))
```

```python
class Atom:
    def __init__(self, fn, after=(), mark=None, minop=-1, mf=False, cost=1, afterc=()):
        self.afterc = list(afterc)
        self.fn = fn; self.after = list(after); self.mark = mark; self.minop = minop; self.mf = mf; self.cost = cost

class Sched:
    def __init__(self, A, L, K=2):
        self.A = A; self.L = L; self.K = K
        self.marks = {}; self.queues = []; self.cm = {}; self.cyc = 0; self.mfree = 0; self.seen = len(A.lines)
    def slot(self):
        return len(self.A.lines)
    def tick(self):
        for l in self.A.lines[self.seen:]:
            if 'mfma' in l:
                self.cyc = max(self.cyc, self.mfree); self.mfree = self.cyc + 16; self.cyc += 8
            else: self.cyc += 4
        self.seen = len(self.A.lines)
    def q(self, atoms):
        self.queues.append(list(atoms))
    def ins(self, txt, **kw):
        return Atom(lambda: self.A(txt), **kw)
    def ds(self, txt, tag, **kw):
        return Atom(lambda: self.L.ds(txt, tag), **kw)
    def ready(self, a, opi):
        if a.minop > opi: return False
        for (m, n) in a.after:
            if m not in self.marks: return False
            if self.slot() - self.marks[m] < n: return False
        self.tick()
        for (m, n) in a.afterc:
            if m not in self.cm: return False
            if opi < 10**6 and max(self.cyc, self.mfree if a.mf else 0) - self.cm[m] < n: return False
        return True
    def emit(self, a):
        a.fn()
        self.tick()
        if a.mark is not None: self.marks[a.mark] = self.slot(); self.cm[a.mark] = self.cyc
    def fill(self, opi, budget):
        progress = True
        while budget > 0 and progress:
            progress = False
            for qu in self.queues:
                if budget <= 0: break
                if qu and self.ready(qu[0], opi):
                    a = qu.pop(0); self.emit(a); progress = True
                    if a.mf: budget = self.K
                    else: budget -= a.cost
    def run(self, main):
        for i, f in enumerate(main):
            extra = f() or 0
            self.marks[('op', i)] = self.mark_at
            self.fill(i, self.K - extra)
        guard = 0
        while any(self.queues):
            before = self.slot()
            self.fill(10**6, 10**6)
            if self.slot() == before:
                self.A("s_nop 0")
                guard += 1
                assert guard < 200, "scheduler stuck"
```

```python
from asmlib import *
from layout import *
import mega, chain
from mega import f2h, mod_to_lds
from chain import l2p, det_wait

RSTR = 336
PART = 32*RSTR

def reduce_setup(A):
    A(f"""
    v_lshrrev_b32 v2, 4, v1
    v_mul_u32_u24 v2, {4*RSTR}, v2
    v_and_b32 v3, 15, v1
    v_lshlrev_b32 v3, 2, v3
    v_add_u32 v2, v2, v3
    s_mul_i32 s15, s12, {PART}
    v_add_u32 v20, s15, v2
    """)
    for k in range(3):
        A(f"""
        v_add_u32 v2, {256*k}, v0
        v_min_u32 v2, 639, v2
        v_mul_u32_u24 v3, 3277, v2
        v_lshrrev_b32 v3, 16, v3
        v_mul_u32_u24 v4, 20, v3
        v_sub_u32 v4, v2, v4                ; q
        v_mul_u32_u24 v5, {RSTR}, v3
        v_lshlrev_b32 v6, 4, v4
        v_add_u32 v{21+k}, v5, v6
        v_mul_u32_u24 v5, 640, v3
        v_lshlrev_b32 v6, 2, v4
        v_add_u32 v5, v5, v6
        v_add_u32 v{24+k}, s20, v5
        v_lshlrev_b32 v{27+k}, 4, v4
        """)

def write_partials(A, ACC):
    for mt in range(2):
        for nt in range(5):
            for r in range(4):
                A(f"ds_write_b32 v20, v{ACC + (mt*5+nt)*4 + r} offset:{(mt*16 + r)*RSTR + nt*64}")

def read_sum(A, k, d):
    for w in range(4):
        A(f"ds_read_b128 v[{d+4*w}:{d+4*w+3}], v{21+k} offset:{w*PART}")
    A("s_waitcnt lgkmcnt(0)")
    for i in range(4):
        A(f"v_add_f32 v{d+i}, v{d+i}, v{d+4+i}\nv_add_f32 v{d+8+i}, v{d+8+i}, v{d+12+i}\nv_add_f32 v{d+i}, v{d+i}, v{d+8+i}")

def gen_b1(A, opts):
    A.comment("==== B1: token combine. group s18, slice -> c0 = s20")
    VEC = 4*PART
    A(f"""
    s_load_dwordx2 s[18:19], s[0:1], {KA['x']}
    s_lshr_b32 s38, s13, 3
    s_and_b32 s20, s13, 7
    s_mul_i32 s20, s20, 80
    s_lshl_b32 s47, s13, {FS}
    s_add_u32 s47, s47, {F_B1}
    """)
    mod_to_lds(A, 2*640, 640, VEC)
    reduce_setup(A)
    A("s_lshl_b32 s15, s20, 2")
    for k in range(3):
        A(f"v_add_u32 v2, s15, v{27+k}\nds_read_b128 v[{32+4*k}:{35+4*k}], v2 offset:{VEC}")
    A(f"""
    v_and_b32 v2, 15, v1
    v_lshrrev_b32 v3, 4, v1
    v_lshlrev_b32 v8, 6, v2
    v_lshlrev_b32 v4, 4, v3
    v_add_u32 v8, v8, v4
    s_lshl_b32 s15, s20, 6
    s_mul_i32 s16, s12, {8*40960}
    s_add_u32 s15, s15, s16
    s_add_u32 s15, s15, 2048
    v_add_u32 v8, s15, v8
    s_mul_i32 s16, s12, {8*2560}
    v_lshlrev_b32 v9, 4, v1
    v_add_u32 v9, s16, v9
    v_mul_u32_u24 v10, 2560, v3
    v_lshlrev_b32 v4, 4, v2
    v_add_u32 v10, v10, v4
    v_add_u32 v10, s16, v10
    v_add_u32 v10, 2048, v10
    v_add_u32 v11, {4*2560}, v10
    """)
    for nt in range(5):
        A(f"""
        v_and_b32 v3, 15, v1
        v_add_u32 v3, s20, v3
        v_add_u32 v3, {16*nt}, v3          ; col
        """)
        mega.slice_addr(A, 3, 12, 16)
        A(f"""
        v_add_u32 v6, 32768, v12
        v_mov_b32 v4, v13
        v_lshrrev_b32 v5, 4, v1
        s_lshl_b32 s15, s12, 3
        v_add_u32 v5, s15, v5
        v_mul_lo_u32 v5, v5, v4
        v_add_u32 v{44+nt}, v6, v5
        v_lshlrev_b32 v4, 2, v4
        v_add_u32 v{49+nt}, v{44+nt}, v4
        """)
        l2p(A, 44+nt, 2); l2p(A, 49+nt, 2)
    for nt in range(5):
        A(f"v_and_b32 v3, 15, v1\nv_add_u32 v3, s20, v3\nv_add_u32 v3, {16*nt}, v3")
        mega.slice_addr(A, 3, 12, 64)
        A(f"""
        s_lshl_b32 s15, s12, 3
        v_mul_lo_u32 v14, v13, s15
        v_add_u32 v12, v12, v14
        v_lshrrev_b32 v14, 4, v1
        v_lshlrev_b32 v14, 4, v14
        v_add_u32 v{192+nt}, v12, v14
        v_mov_b32 v{197+nt}, v13
        """)
    det_wait(A)
    A(f"""
    s_lshl_b32 s15, s20, 11
    s_mul_i32 s16, s12, 40960
    s_add_u32 s15, s15, s16
    v_lshlrev_b32 v207, 7, v1
    v_add_u32 v207, s15, v207
    s_mov_b32 s46, 0
    s_mov_b32 s48, 0
    s_mov_b32 s49, 0
    s_mov_b32 s50, 0
    s_waitcnt lgkmcnt(0)
    """)
    def loadU():
        A("s_add_u32 s33, s38, 4\ns_min_u32 s33, s33, 64\ns_cmp_lt_u32 s46, s33\ns_cselect_b32 s46, 0, s46\ns_add_u32 s33, s38, 1")
        A.wait_prog(F_U, 32, 33, 46)
        A(f"""
        s_mul_i32 s15, s38, {32*40960}
        s_add_u32 s15, s15, {UT0}
        s_add_u32 s40, s4, s15
        s_addc_u32 s41, s5, 0
        """)
        for nt in range(5): A(f"v_mov_b32 v{202+nt}, v{192+nt}")
        for hh in range(8):
            for nt in range(5):
                d = (hh*5 + nt)*4
                A(f"global_load_dwordx4 a[{d}:{d+3}], v{202+nt}, s[40:41] sc1")
                if hh < 7: A(f"v_add_u32 v{202+nt}, v{202+nt}, v{197+nt}")
            if opts.get('thr', 0): A(f"s_waitcnt vmcnt({opts.get('thr', 0)})")
        if opts.get('touch', 0):
            sk = A.newlabel("tch")
            A(f"s_add_u32 s33, s38, 4\ns_cmp_lt_u32 s46, s33\ns_cbranch_scc1 {sk}")
            A.addbase(40, 3*32*40960)
            for i in range(5):
                A(f"v_add_u32 v2, {i*8192}, v207\nglobal_load_dword v208, v2, s[40:41]")
            A.label(sk)
    loadU()
    A.label(".LB1_top")
    PT = 64; PM = 128; ACC = 144; XR = 184
    A("s_add_u32 s33, s38, 1")
    A.wait_prog(F_S, 32, 33, 48)
    A.wait_prog(F_Y, 32, 33, 49)
    A(f"""
    s_mul_i32 s15, s38, {32*2560}
    s_add_u32 s15, s15, {PT0}
    s_add_u32 s40, s4, s15
    s_addc_u32 s41, s5, 0
    s_lshl_b32 s15, s38, 20
    s_lshr_b32 s16, s38, 1
    s_and_b32 s16, s16, 1
    s_lshl_b32 s16, s16, 13
    s_xor_b32 s42, s34, s16
    s_add_u32 s42, s42, s15
    s_addc_u32 s43, s35, 0
    """)
    for ks in range(2):
        for mt in range(2):
            d = PM + (ks*2 + mt)*4
            A(f"global_load_dwordx4 v[{d}:{d+3}], v{10+ks}, s[40:41] offset:{mt*256} sc1")
    for hh in range(8):
        for mt in range(2):
            d = PT + (hh*2 + mt)*4
            A(f"global_load_dwordx4 v[{d}:{d+3}], v9, s[40:41] offset:{mt*1024} sc1")
        if hh < 7: A.addbase(40, 2560)
    for ks in range(2):
        for nt in range(5):
            d = 160 + (ks*5 + nt)*4
            A(f"global_load_dwordx4 a[{d}:{d+3}], v{44+ks*5+nt}, s[42:43] sc1")
    A(f"s_mul_i32 s15, s38, {32*640}")
    for k in range(3):
        A(f"v_add_u32 v2, s15, v{24+k}\nv_lshlrev_b32 v2, 1, v2\nglobal_load_dwordx2 v[{XR+2*k}:{XR+2*k+1}], v2, s[18:19]")
    for hh in range(8):
        A(f"s_waitcnt vmcnt({13 + 2*(7-hh)})")
        for mt in range(2):
            for nt in range(5):
                a = ACC + (mt*5 + nt)*4
                p = PT + (hh*2 + mt)*4
                u = (hh*5 + nt)*4
                cs = "0" if hh == 0 else f"v[{a}:{a+3}]"
                A(f"v_mfma_f32_16x16x32_bf16 v[{a}:{a+3}], v[{p}:{p+3}], a[{u}:{u+3}], {cs}")
    A("s_waitcnt vmcnt(3)")
    for ks in range(2):
        for mt in range(2):
            for nt in range(5):
                a = ACC + (mt*5 + nt)*4
                p = PM + (ks*2 + mt)*4
                u = 160 + (ks*5 + nt)*4
                A(f"v_mfma_f32_16x16x32_bf16 v[{a}:{a+3}], v[{p}:{p+3}], a[{u}:{u+3}], v[{a}:{a+3}]")
    A("s_nop 7")
    write_partials(A, ACC)
    A("s_waitcnt lgkmcnt(0) vmcnt(0)\ns_barrier")
    A(f"s_mul_i32 s15, s38, {32*640*4}\ns_add_u32 s15, s15, {X20}")
    for k in range(3):
        d = 64 + 16*k
        read_sum(A, k, d)
        x = XR + 2*k
        A(f"""
        v_lshlrev_b32 v{d+4}, 16, v{x}
        v_and_b32 v{d+5}, 0xffff0000, v{x}
        v_lshlrev_b32 v{d+6}, 16, v{x+1}
        v_and_b32 v{d+7}, 0xffff0000, v{x+1}
        """)
        for i in range(4): A(f"v_fma_f32 v{d+i}, v{d+i}, v{32+4*k+i}, v{d+4+i}")
        A(f"v_lshlrev_b32 v2, 2, v{24+k}\nv_add_u32 v2, s15, v2")
        A(f"global_store_dwordx4 v2, v[{d}:{d+3}], s[4:5] sc1")
    A(f"""
    s_waitcnt vmcnt(0)
    s_barrier
    s_add_u32 s50, s50, 1
    """)
    A.publish(47, 50)
    A(f"""
    s_add_u32 s38, s38, 3
    s_cmp_ge_u32 s38, 64
    s_cbranch_scc1 .LB1_fin
    """)
    loadU()
    A("s_branch .LB1_top")
    A.label(".LB1_fin")
    A.stamp(3)
    A("s_branch .Lend")

def gen_ln2(A, opts):
    A.comment("==== LN2: y = LN(LN(x2)*(1+cb)+sb)")
    A(f"""
    s_sub_u32 s13, s13, 24
    s_lshr_b32 s38, s13, 1
    s_and_b32 s20, s13, 1             ; half
    s_lshl_b32 s47, s13, {FS}
    s_add_u32 s47, s47, {F_LN}
    """)
    mod_to_lds(A, 3*640, 1280, 0)
    A("v_and_b32 v2, 15, v1\nv_lshlrev_b32 v3, 5, v2")
    for j in range(5):
        A(f"ds_read_b128 v[{64+8*j}:{67+8*j}], v3 offset:{512*j}")
        A(f"ds_read_b128 v[{68+8*j}:{71+8*j}], v3 offset:{512*j+16}")
        A(f"ds_read_b128 v[{104+8*j}:{107+8*j}], v3 offset:{2560+512*j}")
        A(f"ds_read_b128 v[{108+8*j}:{111+8*j}], v3 offset:{2560+512*j+16}")
    A(f"""
    v_lshrrev_b32 v4, 4, v1
    s_lshl_b32 s15, s12, 2
    v_add_u32 v4, s15, v4
    s_lshl_b32 s15, s20, 4
    v_add_u32 v5, s15, v4
    v_mul_u32_u24 v5, 2560, v5
    v_add_u32 v5, v5, v3
    v_lshrrev_b32 v6, 2, v2
    v_lshlrev_b32 v6, 10, v6
    v_and_b32 v7, 3, v2
    v_lshlrev_b32 v7, 8, v7
    v_add_u32 v6, v6, v7
    v_lshlrev_b32 v7, 4, v4
    v_add_u32 v6, v6, v7
    s_mul_i32 s15, s20, 20480
    v_add_u32 v6, s15, v6
    s_mov_b32 s50, 0
    s_waitcnt lgkmcnt(0)
    """)
    for i in range(40): A(f"v_add_f32 v{104+i}, 1.0, v{104+i}")
    A.label(".LLN_top")
    lp = A.newlabel("lnw")
    A(f"""
    s_mul_i32 s15, s38, 171
    s_lshr_b32 s15, s15, 9            ; s/3
    s_mul_i32 s16, s15, 3
    s_sub_u32 s16, s38, s16           ; s%3
    s_add_u32 s33, s15, 1
    s_lshl_b32 s16, s16, {FS+3}
    s_add_u32 s16, s16, {F_B1}
    v_and_b32 v2, 7, v1
    v_lshlrev_b32 v2, {FS}, v2
    v_add_u32 v2, s16, v2
    """)
    A.label(lp)
    A(f"""
    global_load_dword v3, v2, s[10:11] sc1
    s_waitcnt vmcnt(0)
    v_cmp_gt_u32 vcc, s33, v3
    s_cbranch_vccz .LLN_go
    s_sleep {A.PSL}
    """)
    A.guard()
    A(f"s_branch {lp}")
    A.label(".LLN_go")
    A(f"""
    s_mul_i32 s15, s38, {32*2560}
    s_add_u32 s15, s15, {X20}
    s_add_u32 s40, s4, s15
    s_addc_u32 s41, s5, 0
    s_mul_i32 s15, s38, 40960
    s_add_u32 s15, s15, {YF0}
    s_add_u32 s42, s4, s15
    s_addc_u32 s43, s5, 0
    """)
    for j in range(5):
        A(f"global_load_dwordx4 v[{16+8*j}:{19+8*j}], v5, s[40:41] offset:{512*j} sc1")
        A(f"global_load_dwordx4 v[{20+8*j}:{23+8*j}], v5, s[40:41] offset:{512*j+16} sc1")
    A("s_waitcnt vmcnt(0)")
    for ph in range(2):
        A("v_add_f32 v8, v16, v17")
        for i in range(2, 40): A(f"v_add_f32 v8, v8, v{16+i}")
        A.red16(8)
        A(f"v_mul_f32 v8, {f2h(1/640)}, v8")
        for i in range(40): A(f"v_sub_f32 v{16+i}, v{16+i}, v8")
        A("v_mul_f32 v9, v16, v16")
        for i in range(1, 40): A(f"v_fmac_f32 v9, v{16+i}, v{16+i}")
        A.red16(9)
        A(f"v_mov_b32 v10, {f2h(1e-5)}\nv_fmac_f32 v10, {f2h(1/640)}, v9\nv_rsq_f32 v10, v10\ns_nop 0")
        for i in range(40):
            A(f"v_mul_f32 v{16+i}, v{16+i}, v10")
            if ph == 0: A(f"v_fma_f32 v{16+i}, v{16+i}, v{104+i}, v{64+i}")
    for i in range(20): A(f"v_cvt_pk_bf16_f32 v{144+i}, v{16+2*i}, v{17+2*i}")
    for j in range(5):
        A(f"global_store_dwordx4 v6, v[{144+4*j}:{147+4*j}], s[42:43] sc1")
        if j < 4: A.addbase(42, 4096)
    A("s_waitcnt vmcnt(0)\ns_barrier\ns_add_u32 s50, s50, 1")
    A.publish(47, 50)
    A(f"""
    s_add_u32 s38, s38, 2
    s_cmp_lt_u32 s38, 64
    s_cbranch_scc1 .LLN_top
    """)
    A.stamp(3)
    A("s_branch .Lend")

def gen_m2(A, opts):
    A.comment("==== M2: out = x2 + gb*(hh w2 + b2)")
    VEC = 131072
    A(f"""
    s_sub_u32 s13, s13, 36
    s_load_dwordx4 s[16:19], s[0:1], {KA['w2']}    ; w2, b2
    s_lshr_b32 s38, s13, 3
    s_lshr_b32 s21, s13, 3            ; group
    s_and_b32 s20, s13, 7
    s_mul_i32 s20, s20, 80
    s_waitcnt lgkmcnt(0)
    s_mov_b32 s44, s18
    s_mov_b32 s45, s19
    s_mul_i32 s15, s12, {384*1280}
    s_lshl_b32 s22, s20, 1
    s_add_u32 s15, s15, s22
    s_add_u32 s24, s16, s15
    s_addc_u32 s25, s17, 0
    """)
    mod_to_lds(A, 5*640, 640, VEC)
    A(f"""
    v_lshrrev_b32 v2, 3, v1
    v_mul_u32_u24 v3, 1280, v2
    v_lshrrev_b32 v4, 1, v2
    v_and_b32 v4, 3, v4
    v_lshlrev_b32 v4, 1, v4
    v_and_b32 v5, 7, v1
    v_xor_b32 v4, v4, v5
    v_lshlrev_b32 v4, 4, v4
    v_add_u32 v4, v4, v3
    s_lshl_b32 s30, s12, 15
    v_lshrrev_b32 v12, 5, v1
    v_lshlrev_b32 v13, 11, v12         ; (g>>1)*2048
    v_bfe_u32 v12, v1, 2, 3
    v_lshlrev_b32 v14, 7, v12
    v_add_u32 v13, v13, v14
    v_and_b32 v14, 3, v1
    v_lshlrev_b32 v14, 3, v14
    v_add_u32 v13, v13, v14
    v_add_u32 v13, s30, v13
    v_lshrrev_b32 v12, 1, v12
    """)
    for pr in range(4):
        A(f"v_xor_b32 v14, {pr}, v12\nv_lshlrev_b32 v14, 5, v14\nv_add_u32 v{8+pr}, v13, v14")
    def issue(pc):
        buf = (pc % 4)*8192
        for rb in range(4):
            for p in range(2):
                A(f"s_add_u32 m0, s30, {buf + (rb*2+p)*1024 - p*32}\ns_nop 0")
                A(f"global_load_lds_dwordx4 v4, s[24:25] offset:{p*32}")
            A.addbase(24, 8*1280)
    for pc in range(3): issue(pc)
    for pc in range(12):
        infl = min(12, pc+3) - (pc+1)
        A(f"s_waitcnt vmcnt({infl*8})")
        if pc + 3 < 12: issue(pc+3)
        fgl = pc // 6
        for tl in range(2):
            T = 2*(pc % 6) + tl
            c, half = [(c, h) for c in range(6) for h in range(2) if PAIRS[c][h] == T][0]
            for nt in range(5):
                d = ((fgl*6 + c)*5 + nt)*4 + half*2
                pn, pr = (0, nt) if nt < 4 else (1, 3)
                A(f"ds_read_b64_tr_b16 a[{d}:{d+1}], v{8+pr} offset:{(pc%4)*8192 + tl*4096 + pn*1024}")
        A("s_waitcnt lgkmcnt(0)")
    A("s_barrier")
    reduce_setup(A)
    A("s_lshl_b32 s15, s20, 2\ns_lshl_b32 s22, s20, 1")
    for k in range(3):
        A(f"v_add_u32 v2, s15, v{27+k}\nv_add_u32 v2, {VEC}, v2\nds_read_b128 v[{32+4*k}:{35+4*k}], v2")
        A(f"v_lshrrev_b32 v2, 1, v{27+k}\nv_add_u32 v2, s22, v2\nglobal_load_dwordx2 v[{56+2*k}:{57+2*k}], v2, s[44:45]")
    A("s_waitcnt vmcnt(0) lgkmcnt(0)")
    for k in range(3):
        for q in range(2):
            A(f"v_lshlrev_b32 v{44+4*k+2*q}, 16, v{56+2*k+q}\nv_and_b32 v{45+4*k+2*q}, 0xffff0000, v{56+2*k+q}")
    A(f"""
    s_mul_i32 s15, s12, {2*12288}
    v_lshlrev_b32 v8, 4, v1
    v_add_u32 v8, s15, v8
    v_lshlrev_b32 v9, 3, v1
    v_add_u32 v9, s15, v9
    v_add_u32 v9, 4096, v9
    s_lshl_b32 s16, s12, {FS+3}
    s_add_u32 s16, s16, {F_M1}
    v_and_b32 v10, 7, v1
    v_lshlrev_b32 v10, {FS}, v10
    v_add_u32 v10, s16, v10
    """)
    A.stamp(1)
    ACC = 12 + 0
    def loads(HF, XR, seg_s):
        o = [f"s_mul_i32 s15, s{seg_s}, {8*12288}", f"s_add_u32 s15, s15, {HH0}", "s_add_u32 s40, s4, s15", "s_addc_u32 s41, s5, 0"]
        for fgl in range(2):
            for mt in range(2):
                for c in range(4):
                    d = HF + ((fgl*6 + c)*2 + mt)*4
                    o.append(f"global_load_dwordx4 v[{d}:{d+3}], v8, s[40:41] offset:{c*1024} sc1")
                for k in range(2):
                    d = HF + ((fgl*6 + 4 + k)*2 + mt)*4
                    o.append(f"global_load_dwordx2 v[{d}:{d+1}], v9, s[40:41] offset:{k*1024} sc1")
                    o.append(f"global_load_dwordx2 v[{d+2}:{d+3}], v9, s[40:41] offset:{k*1024+512} sc1")
                o += ["s_add_u32 s40, s40, 6144", "s_addc_u32 s41, s41, 0"]
        return o
    HF = 64; ACC = 160; XR = 200
    A("s_mov_b32 s36, 0")
    A.label(".LM2_top")
    have = A.newlabel("m2h"); lp = A.newlabel("m2w"); go = A.newlabel("m2g")
    A(f"s_cmp_eq_u32 s36, 1\ns_cbranch_scc1 {have}\ns_add_u32 s33, s38, 1")
    A.label(lp)
    A(f"global_load_dword v3, v10, s[10:11] sc1\ns_waitcnt vmcnt(0)\nv_cmp_gt_u32 vcc, s33, v3\ns_cbranch_vccz {go}\ns_sleep {A.PSL}")
    A.guard()
    A(f"s_branch {lp}")
    A.label(go)
    A("\n".join(loads(HF, XR, 38)))
    A.label(have)
    A(f"s_mul_i32 s15, s38, {32*640*4}\ns_add_u32 s15, s15, {X20}")
    for k in range(3):
        A(f"v_lshlrev_b32 v2, 2, v{24+k}\nv_add_u32 v2, s15, v2\nglobal_load_dwordx4 v[{XR+4*k}:{XR+4*k+3}], v2, s[4:5] sc1")
    A("global_load_dword v11, v10, s[10:11] sc1")
    for fgl in range(2):
        A(f"s_waitcnt vmcnt({4 + 16*(1-fgl)})")
        for c in range(6):
            for mt in range(2):
                for nt in range(5):
                    a_ = ACC + (mt*5 + nt)*4
                    p = HF + ((fgl*6 + c)*2 + mt)*4
                    u = ((fgl*6 + c)*5 + nt)*4
                    cs = "0" if (fgl == 0 and c == 0) else f"v[{a_}:{a_+3}]"
                    A(f"v_mfma_f32_16x16x32_bf16 v[{a_}:{a_+3}], v[{p}:{p+3}], a[{u}:{u+3}], {cs}")
    sk = A.newlabel("m2s")
    A(f"""
    s_waitcnt vmcnt(0)
    s_add_u32 s33, s38, 2
    v_cmp_gt_u32 vcc, s33, v11
    s_cmp_eq_u64 vcc, 0
    s_cselect_b32 s36, 1, 0
    s_cmp_ge_u32 s38, 63
    s_cselect_b32 s36, 0, s36
    s_barrier
    """)
    write_partials(A, ACC)
    A(f"s_cmp_eq_u32 s36, 0\ns_cbranch_scc1 {sk}\ns_add_u32 s37, s38, 1")
    A("\n".join(loads(HF, XR, 37)))
    A.label(sk)
    A("s_waitcnt lgkmcnt(0)\ns_barrier")
    A(f"s_mul_i32 s15, s38, {32*640*2}")
    for k in range(3):
        d = 212 + 0
        read_sum(A, k, d)
        for i in range(4):
            A(f"v_add_f32 v{d+i}, v{d+i}, v{44+4*k+i}\nv_fma_f32 v{d+i}, v{d+i}, v{32+4*k+i}, v{XR+4*k+i}")
        A(f"""
        v_cvt_pk_bf16_f32 v{228+2*k}, v{d}, v{d+1}
        v_cvt_pk_bf16_f32 v{229+2*k}, v{d+2}, v{d+3}
        v_lshlrev_b32 v2, 1, v{24+k}
        v_add_u32 v2, s15, v2
        global_store_dwordx2 v2, v[{228+2*k}:{229+2*k}], s[8:9]
        """)
    A(f"""
    s_add_u32 s38, s38, 1
    s_cmp_lt_u32 s38, 64
    s_cbranch_scc1 .LM2_top
    """)
    A.stamp(3)
    A("s_branch .Lend")

def gen_stageB(A, opts):
    A(f"""
    s_barrier
    s_cmp_ge_u32 s13, {chain.NC}
    s_cbranch_scc1 .Lr_nc
    s_add_u32 s13, s13, 64
    s_bitcmp1_b32 s3, 3
    s_cbranch_scc0 .Lend
    s_branch .Lrole_C
    """)
    A.label(".Lr_nc")
    A(f"""
    s_sub_u32 s13, s13, {chain.NC}
    s_cmp_lt_u32 s13, 24
    s_cbranch_scc1 .Lr_b1
    s_cmp_lt_u32 s13, 28
    s_cbranch_scc1 .Lr_ln
    s_cmp_lt_u32 s13, 36
    s_cbranch_scc1 .Lr_m1
    s_bitcmp1_b32 s3, 7
    s_cbranch_scc0 .Lend
    """)
    gen_m2(A, opts)
    A.label(".Lr_b1")
    A("s_bitcmp1_b32 s3, 4\ns_cbranch_scc0 .Lend")
    gen_b1(A, opts)
    A.label(".Lr_ln")
    A("s_bitcmp1_b32 s3, 5\ns_cbranch_scc0 .Lend")
    gen_ln2(A, opts)
    A.label(".Lr_m1")
    A(f"""
    s_bitcmp1_b32 s3, 6
    s_cbranch_scc0 .Lend
    s_sub_u32 s13, s13, 28
    s_lshl_b32 s26, s13, {FS+2}
    s_add_u32 s26, s26, {F_M1}
    s_lshr_b32 s38, s13, 3
    s_and_b32 s13, s13, 7              ; fg
    s_load_dwordx2 s[20:21], s[0:1], {KA['w1']}
    s_mul_i32 s16, s38, 40960
    s_add_u32 s16, s16, {YF0}
    s_add_u32 s22, s4, s16
    s_addc_u32 s23, s5, 0
    s_lshl_b32 s16, s38, 3
    s_add_u32 s16, s16, s13
    s_mul_i32 s16, s16, 12288
    s_add_u32 s16, s16, {HH0}
    s_add_u32 s24, s4, s16
    s_addc_u32 s25, s5, 0
    s_mov_b32 s27, {8*12288}
    s_mul_i32 s16, s13, 384
    s_waitcnt lgkmcnt(0)
    s_add_u32 s20, s20, s16
    s_addc_u32 s21, s21, 0
    """)
    mega.gen_proj(A, "m1", m1=True, opts=opts)
```
